```python
import torch

def _softmax(x, axis=-1):
    return torch.softmax(x, dim=axis)
def _gelu(x):
    return torch.nn.functional.gelu(x, approximate="tanh")
def _silu(x):
    return torch.nn.functional.silu(x)
def _sigmoid(x):
    return torch.sigmoid(x)
def _layernorm(x, axis=-1, eps=1e-5):
    m = x.mean(dim=axis, keepdim=True)
    v = x.var(dim=axis, keepdim=True, unbiased=False)
    return (x - m) / torch.sqrt(v + eps)
def _scatter_add(tgt, idx, src, axis=0):
    return tgt.clone().index_add_(axis, idx, src)
def _segment_sum(src, seg, n):
    out = torch.zeros((n,) + src.shape[1:], dtype=src.dtype)
    return out.index_add_(0, seg, src)
def _pad(x, pw):
    flat = tuple(v for pair in reversed(pw) for v in pair)
    return torch.nn.functional.pad(x, flat)

kernel_name = 'interleave_layers__linear_attn_block__grouped_kv_mqa__prompt'

def setup_inputs():

    _w = (lambda a: (lambda t: t.to(torch.bfloat16) if t.is_floating_point() else t)(torch.as_tensor(a)))
    def _A_setup():
        B, S, D = 1, 2048, 512
        return {
            "x": _w((lambda *s: torch.randn(*s, dtype=torch.bfloat16) * 0.05)(B, S, D)),
            "wqkv": _w((lambda *s: torch.randn(*s, dtype=torch.bfloat16) * 0.05)(D, 3 * D)),
            "wo": _w((lambda *s: torch.randn(*s, dtype=torch.bfloat16) * 0.05)(D, D)),
        }
    _A_in = _A_setup()

    def _B_setup():
        B, S, D, H = 1, 2048, 512, 32
        Dh = D // H
        return {
            "x": _w((lambda *s: torch.randn(*s, dtype=torch.bfloat16) * 0.05)(B, S, D)),
            "wq": _w((lambda *s: torch.randn(*s, dtype=torch.bfloat16) * 0.1)(D, H * Dh)),
            "wk": _w((lambda *s: torch.randn(*s, dtype=torch.bfloat16) * 0.1)(D, Dh)),
            "wv": _w((lambda *s: torch.randn(*s, dtype=torch.bfloat16) * 0.05)(D, Dh)),
            "wo": _w((lambda *s: torch.randn(*s, dtype=torch.bfloat16) * 0.05)(H * Dh, D)),
        }
    _B_in = _B_setup()

    return {
        "A_x": _A_in["x"],
        "A_wqkv": _A_in["wqkv"],
        "A_wo": _A_in["wo"],
        "B_x": _B_in["x"],
        "B_wq": _B_in["wq"],
        "B_wk": _B_in["wk"],
        "B_wv": _B_in["wv"],
        "B_wo": _B_in["wo"],
    }

def reference(A_x, A_wqkv, A_wo, B_x, B_wq, B_wk, B_wv, B_wo):
    def _A_ref(x, wqkv, wo):
        B, S, D = x.shape
        H = 32; Dh = D // H
        qkv = (lambda x, *d: x.permute(*d))((x @ wqkv).reshape(B, S, 3, H, Dh), 2, 0, 3, 1, 4)
        q, k, v = qkv[0], qkv[1], qkv[2]
        phi = lambda t: torch.where(t > 0, t + 1, torch.exp(t)) + 1e-6
        pq, pk = phi(q), phi(k)
        kv = torch.einsum("bhsd,bhse->bhde", pk, v)
        z = torch.einsum("bhsd->bhd", pk)
        num = torch.einsum("bhqd,bhde->bhqe", pq, kv)
        den = torch.einsum("bhqd,bhd->bhq", pq, z)[..., None] + 1e-6
        o = num / den
        return (lambda x, *d: x.permute(*d))(o, 0, 2, 1, 3).reshape(B, S, D) @ wo

    def _B_ref(x, wq, wk, wv, wo):
        B, S, D = x.shape
        H = 32
        Dh = D // H
        q = (lambda x, *d: x.permute(*d))((x @ wq).reshape(B, S, H, Dh), 0, 2, 1, 3)
        k = x @ wk
        v = x @ wv
        scores = torch.einsum("bhqd,bkd->bhqk", q, k) * (Dh ** -0.5)
        p = _softmax(scores, axis=-1)
        o = torch.einsum("bhqk,bkd->bhqd", p, v)
        return (lambda x, *d: x.permute(*d))(o, 0, 2, 1, 3).reshape(B, S, H * Dh) @ wo

    x = A_x
    x = x + _A_ref(_layernorm(x, axis=-1), A_wqkv, A_wo)
    x = x + _B_ref(_layernorm(x, axis=-1), B_wq, B_wk, B_wv, B_wo)
    x = x + _A_ref(_layernorm(x, axis=-1), A_wqkv, A_wo)
    x = x + _B_ref(_layernorm(x, axis=-1), B_wq, B_wk, B_wv, B_wo)
    return x
```

```python
import re

_REG = re.compile(r'\b([vas])(\d+)\b|\b([vas])\[(\d+):(\d+)\]|\b(vcc|exec|m0|scc)\b')

TRANS = ('v_exp_f32', 'v_log_f32', 'v_rcp_f32', 'v_rsq_f32', 'v_sqrt_f32', 'v_sin_f32', 'v_cos_f32',
         'v_exp_f16', 'v_rcp_iflag_f32')


def regs_of(tok):
    out = set()
    for m in _REG.finditer(tok):
        if m.group(1):
            out.add((m.group(1), int(m.group(2))))
        elif m.group(3):
            for i in range(int(m.group(4)), int(m.group(5)) + 1):
                out.add((m.group(3), i))
        else:
            out.add((m.group(6), 0))
    return out


class Ins:
    __slots__ = ('text', 'op', 'kind', 'dst', 'src', 'passes', 'srcc', 'srcab', 'dpp', 'nstates', 'wide_store',
                 'ldsdma', 'target', 'drange', 'crange')

    def __init__(self, text):
        self.text = text
        body = text.split(';')[0].strip()
        parts = body.split(None, 1)
        op = parts[0]
        self.op = op
        rest = parts[1] if len(parts) > 1 else ''
        ops = [o.strip() for o in rest.split(',')] if rest else []
        self.dst = set();
        self.src = set();
        self.passes = 0
        self.srcc = set();
        self.srcab = set();
        self.dpp = False
        self.nstates = 1
        self.wide_store = set()
        self.ldsdma = False
        self.target = None
        self.drange = None;
        self.crange = None
        allregs = lambda lst: set().union(*[regs_of(o) for o in lst]) if lst else set()
        if op == 's_nop':
            self.kind = 'nop';
            self.nstates = int(ops[0], 0) + 1
        elif op.startswith('v_mfma'):
            self.kind = 'mfma'
            self.passes = 8 if '32x32' in op else 4
            self.dst = regs_of(ops[0]);
            self.srcab = regs_of(ops[1]) | regs_of(ops[2])
            c = ops[3].split()[0]
            self.srcc = regs_of(c)
            self.src = self.srcab | self.srcc
            self.drange = ops[0];
            self.crange = c
        elif op.startswith('v_'):
            self.kind = 'valu'
            if op.split('_e')[0] in TRANS or op in TRANS:
                self.kind = 'trans'
            if op.startswith('v_dot'):
                self.kind = 'dl'
            if 'dpp' in op or 'quad_perm' in rest or 'row_' in rest:
                self.dpp = True
            if op.startswith('v_permlane'):
                self.kind = 'permlane'
                self.dst = allregs(ops[:2]);
                self.src = allregs(ops[:2])
            elif op.startswith('v_cmp'):
                self.dst = regs_of(ops[0]);
                self.src = allregs(ops[1:])
                if op.startswith('v_cmpx'):
                    self.dst |= {('exec', 0)}
            elif op.startswith('v_add_co') or op.startswith('v_sub_co') or op.startswith('v_addc_co') or op.startswith('v_subb_co'):
                self.dst = allregs(ops[:2]);
                self.src = allregs(ops[2:])
            elif op == 'v_nop':
                pass
            else:
                self.dst = regs_of(ops[0]);
                self.src = allregs(ops[1:])
                if op.startswith('v_fmac') or op.startswith('v_dot2c') or 'UNUSED_PRESERVE' in rest or op.startswith('v_writelane') or self.dpp:
                    self.src |= self.dst
                if self.kind == 'dl' and len(ops) >= 4:
                    self.srcc = regs_of(ops[3]);
                    self.srcab = allregs(ops[1:3])
                elif self.kind == 'dl':
                    self.srcc = self.dst;
                    self.srcab = allregs(ops[1:3])
        elif op.startswith('ds_'):
            self.kind = 'ds'
            if op.startswith('ds_read') or 'permute' in op or 'swizzle' in op or '_rtn' in op:
                self.dst = regs_of(ops[0]);
                self.src = allregs(ops[1:])
                if 'd16' in op: self.src |= self.dst
            else:
                self.src = allregs(ops)
        elif op.startswith('global_') or op.startswith('buffer_') or op.startswith('flat_'):
            self.kind = 'vmem'
            if 'load_lds' in op or re.search(r'\blds\b', rest):
                self.ldsdma = True
                self.src = allregs(ops) | {('m0', 0)}
            elif 'load' in op:
                self.dst = regs_of(ops[0]);
                self.src = allregs(ops[1:])
                if 'd16' in op: self.src |= self.dst
            elif 'atomic' in op:
                if 'sc0' in rest:
                    self.dst = regs_of(ops[0])
                self.src = allregs(ops)
            elif 'store' in op:
                self.src = allregs(ops)
                if 'x4' in op or 'x3' in op:
                    d = ops[0] if op.startswith('buffer_') else ops[1]
                    self.wide_store = regs_of(d)
        elif op.startswith('s_'):
            self.kind = 'salu'
            if op.startswith('s_cbranch') or op == 's_branch':
                self.kind = 'branch';
                self.target = ops[0]
            elif op.startswith('s_cmp') or op in ('s_waitcnt', 's_barrier', 's_endpgm', 's_setprio', 's_sleep'):
                self.src = allregs(ops)
            elif ops:
                self.dst = regs_of(ops[0]);
                self.src = allregs(ops[1:])
                if 'saveexec' in op: self.dst |= {('exec', 0)}
        else:
            raise ValueError('unknown instr ' + text)


VALU_KINDS = ('valu', 'trans', 'dl', 'permlane')


def vg(s):
    return {r for r in s if r[0] in 'va'}


def sg(s):
    return {r for r in s if r[0] in ('s', 'vcc')}


def need(p, c):
    n = 0
    pv = p.kind in VALU_KINDS
    cv = c.kind in VALU_KINDS
    if pv:
        w = vg(p.dst)
        if c.kind == 'mfma' and w & c.src: n = max(n, 2)
        if p.kind == 'trans' and cv and c.kind != 'trans' and w & c.src: n = max(n, 1)
        if c.op.startswith('v_readfirstlane') or c.op.startswith('v_readlane'):
            if w & c.src: n = max(n, 1)
        if c.kind == 'permlane' and w & c.src: n = max(n, 2)
        if cv and c.dpp and w & c.src: n = max(n, 2)
        ws = sg(p.dst)
        if ws:
            if c.kind == 'vmem' and ws & c.src: n = max(n, 5)
            if (cv or c.kind == 'mfma') and ws & c.src:
                n = max(n, 4 if ('readlane' in c.op or 'writelane' in c.op) else 2)
        if ('exec', 0) in p.dst:
            if cv or c.kind == 'mfma': n = max(n, 5)
        if p.kind == 'dl':
            if c.op == p.op:
                if w & c.srcab: n = max(n, 3)
            elif (w & c.src) or (w & vg(c.dst)):
                n = max(n, 3)
        if 'sdwa' in p.op and cv and ((w & c.src) or (w & vg(c.dst))): n = max(n, 1)
    if p.kind == 'mfma':
        big = p.passes == 8
        d = p.dst
        if c.kind == 'mfma':
            if d & c.srcab: n = max(n, 12 if big else 8)
            if d & c.srcc:
                if not (c.crange == p.drange and c.passes == p.passes): n = max(n, 10 if big else 6)
            elif d & c.dst:
                if not (c.passes == p.passes and c.drange == p.drange): n = max(n, 10 if big else 6)
        elif cv or c.kind in ('ds', 'vmem'):
            if (d & c.src) or (d & c.dst): n = max(n, 12 if big else 8)
        if cv and (p.srcc & vg(c.dst)): n = max(n, 7 if big else 3)
        if c.kind in ('ds', 'vmem') and (p.srcc & vg(c.dst)): n = max(n, 7 if big else 3)
    if p.kind == 'salu' and ('m0', 0) in p.dst:
        if c.ldsdma or 'addtid' in c.op: n = max(n, 1)
    if p.wide_store:
        if p.wide_store & vg(c.dst):
            n = max(n, 2 if (cv or c.kind == 'mfma') else 1)
    return n


class Asm:
    def __init__(self):
        self.items = []

    def I(self, text):
        for line in text.strip().split('\n'):
            line = line.strip()
            if not line: continue
            if line.startswith(';'):
                self.items.append(('t', '    ' + line));
                continue
            self.items.append(('i', Ins(line)))

    def L(self, name):
        self.items.append(('l', name))

    def T(self, text):
        self.items.append(('t', text))

    WIN = 22

    def _pad_linear(self):
        out = []
        hist = []
        for it in self.items:
            if it[0] == 'i':
                c = it[1]
                dist = 0;
                req = 0
                for p in reversed(hist[-self.WIN:]):
                    n = need(p, c)
                    if n - dist > req: req = n - dist
                    dist += p.nstates
                    if dist > 20: break
                while req > 0:
                    k = min(req, 16)
                    nop = Ins(f's_nop {k - 1}')
                    out.append(('i', nop));
                    hist.append(nop)
                    req -= k
                out.append(it);
                hist.append(c)
                if c.op in ('s_branch', 's_endpgm'):
                    hist = []
            else:
                if it[0] == 't' and it[1].lstrip().startswith('.p2align 8'):
                    hist = []
                out.append(it)
        self.items = out

    def _pad_branches(self):
        changed = False
        labels = {it[1]: i for i, it in enumerate(self.items) if it[0] == 'l'}
        i = 0
        while i < len(self.items):
            it = self.items[i]
            if it[0] == 'i' and it[1].kind == 'branch' and it[1].target in labels:
                hist = []
                j = i
                while j >= 0 and len(hist) < self.WIN:
                    if self.items[j][0] == 'i':
                        if j != i and self.items[j][1].op in ('s_branch', 's_endpgm'): break
                        hist.append(self.items[j][1])
                    j -= 1
                after = []
                j = labels[it[1].target]
                while j < len(self.items) and len(after) < self.WIN:
                    if self.items[j][0] == 'i':
                        after.append(self.items[j][1])
                        if self.items[j][1].op in ('s_branch', 's_endpgm'): break
                    j += 1
                req = 0
                da = 0
                for c in after:
                    dist = da
                    for p in hist:
                        n = need(p, c)
                        if n - dist > req: req = n - dist
                        dist += p.nstates
                        if dist > 20: break
                    da += c.nstates
                    if da > 20: break
                if req > 0:
                    self.items.insert(i, ('i', Ins(f's_nop {req - 1}')))
                    labels = {x[1]: k for k, x in enumerate(self.items) if x[0] == 'l'}
                    changed = True
                    i += 1
            i += 1
        return changed

    def text(self):
        self._pad_linear()
        while self._pad_branches():
            pass
        out = []
        for it in self.items:
            if it[0] == 'i':
                out.append('    ' + it[1].text)
            elif it[0] == 'l':
                out.append(it[1] + ':')
            else:
                out.append(it[1])
        return '\n'.join(out) + '\n'


def vr(b, n=1):
    return f'v{b}' if n == 1 else f'v[{b}:{b + n - 1}]'


def sr(b, n=1):
    return f's{b}' if n == 1 else f's[{b}:{b + n - 1}]'
```

```python
from asmlib import vr, sr

L_XN = 0
L_QB = 8192
L_OF = 16384
L_XR = 24576
L_PART = 32768
PSTR = 2080
PBUF = 16 * PSTR
L_LP = L_PART + 2 * PBUF
L_FLAG = L_LP + 8192
L_MAX = L_FLAG + 64
K4_LDS = L_MAX + 4096

KREG, VREG, WBUF = 16, 48, 112
S0, S1, PB, OA, QF, OACC, QA = 176, 192, 208, 216, 232, 236, 252
V_L16, V_QR, V_PW, V_LW, V_RED, V_REDL, V_OFW, V_FR, V_QW, V_FM, V_T0, V_T1, V_T2 = 3, 4, 5, 6, 7, 8, 9, 10, 11, 12, 13, 14, 15


def wave_sum(a, x, t):
    for m in ('quad_perm:[1,0,3,2]', 'quad_perm:[2,3,0,1]', 'row_half_mirror', 'row_mirror'):
        a.I(f'v_add_f32_dpp v{x}, v{x}, v{x} {m} row_mask:0xf bank_mask:0xf')
    for lv in (16, 32):
        a.I(f'v_mov_b32 v{t}, v{x}')
        a.I(f'v_permlane{lv}_swap_b32 v{x}, v{t}')
        a.I(f'v_add_f32 v{x}, v{x}, v{t}')


def gen_k4(a, label, first, G):
    WS_X1, WS_X2, WS_X3, WS_WQ, WS_WOB, WS_KB, WS_VB, WS_SIZE = [G[k] for k in
        ('WS_X1', 'WS_X2', 'WS_X3', 'WS_WQ', 'WS_WOB', 'WS_KB', 'WS_VB', 'WS_SIZE')]
    srd, khead, kernels = G['srd'], G['khead'], G['kernels']
    khead(a, label)
    P = label[:3]
    SWS, SOUT, SWL = 20, 24, 32
    a.I('s_cmp_ge_u32 s2, 256')
    a.I(f's_cbranch_scc1 {P}_end')
    a.I(f's_load_dwordx2 s[4:5], s[0:1], {G["KA_OUT"]}')
    a.I(f's_load_dwordx2 s[10:11], s[0:1], {G["KA_WS"]}')
    a.I('v_lshrrev_b32 v1, 6, v0')
    a.I('v_and_b32 v2, 63, v0')
    a.I('v_readfirstlane_b32 s3, v1')
    a.I(f'v_lshlrev_b32 v{V_L16}, 4, v2')
    a.I('s_waitcnt lgkmcnt(0)')
    srd(a, SWS, 10, WS_SIZE)
    srd(a, SWL, 10, WS_SIZE)
    if first:
        srd(a, SOUT, 10, 0x200000, WS_X2)
    else:
        srd(a, SOUT, 4, 0x200000)
    src = WS_X1 if first else WS_X3
    a.I('s_and_b32 s29, s2, 7')
    a.I('s_lshl_b32 s29, s29, 5')
    a.I('s_lshr_b32 s30, s2, 3')
    a.I('s_add_u32 s29, s29, s30')
    a.I('s_lshl_b32 s30, s29, 3')
    a.I('s_add_u32 s30, s30, s3')
    a.I('s_lshl_b32 s30, s30, 10')
    a.I(f's_add_u32 s30, s30, {src:#x}')
    a.I(f'buffer_load_dwordx4 {vr(S0, 4)}, v{V_L16}, s[{SWS}:{SWS + 3}], s30 offen')
    a.I('s_lshl_b32 s36, s3, 14')
    a.I(f's_add_u32 s31, s36, {WS_WQ:#x}')
    for i in range(16):
        a.I(f'buffer_load_dwordx4 {vr(WBUF + 4 * i, 4)}, v{V_L16}, s[{SWS}:{SWS + 3}], s31 offen offset:{(i & 3) * 1024}')
        if (i & 3) == 3 and i < 15:
            a.I('s_add_u32 s31, s31, 4096')

    def load_kv():
        a.I('s_lshl_b32 s30, s3, 13')
        a.I(f's_add_u32 s31, s30, {WS_KB:#x}')
        for i in range(8):
            a.I(f'buffer_load_dwordx4 {vr(KREG + 4 * i, 4)}, v{V_L16}, s[{SWS}:{SWS + 3}], s31 offen offset:{(i & 3) * 1024}')
            if i == 3:
                a.I('s_add_u32 s31, s31, 4096')
        for i in range(64):
            a.I(f'v_mov_b32 v{VREG + i}, {G["ONES"]:#x}')
        a.I(f'v_and_b32 v{V_T0}, 15, v2')
        a.I(f'v_lshrrev_b32 v{V_T1}, 5, v2')
        a.I(f'v_lshlrev_b32 v{V_T0}, 4, v{V_T0}')
        a.I(f'v_lshl_add_u32 v{V_T0}, v{V_T1}, 8, v{V_T0}')
        a.I(f's_add_u32 s31, s30, {WS_VB:#x}')
        a.I('s_mov_b32 s40, 0x0000ffff')
        a.I('s_mov_b32 s41, 0x0000ffff')
        a.I('s_mov_b64 exec, s[40:41]')
        for i in range(16):
            a.I(f'buffer_load_dwordx4 {vr(VREG + 4 * i, 4)}, v{V_T0}, s[{SWS}:{SWS + 3}], s31 offen offset:{(i & 7) * 512}')
            if i == 7:
                a.I('s_add_u32 s31, s31, 4096')
        a.I('s_mov_b64 exec, -1')
    load_kv()
    a.I(f'v_and_b32 v{V_T0}, 31, v2')
    a.I(f'v_lshrrev_b32 v{V_T1}, 5, v2')
    a.I(f'v_lshlrev_b32 v{V_QR}, 5, v{V_T0}')
    a.I(f'v_lshl_add_u32 v{V_QR}, v{V_T1}, 4, v{V_QR}')
    a.I(f'v_add_u32 v{V_QR}, {L_QB}, v{V_QR}')
    a.I(f's_mul_i32 s30, s3, {PSTR}')
    a.I(f's_add_u32 s30, s30, {L_PART}')
    a.I(f'v_add_u32 v{V_PW}, s30, v{V_L16}')
    a.I('s_lshl_b32 s30, s3, 8')
    a.I(f's_add_u32 s30, s30, {L_LP}')
    a.I(f'v_lshl_add_u32 v{V_LW}, v2, 2, s30')
    a.I('s_lshr_b32 s30, s3, 2')
    a.I('s_bfe_u32 s31, s3, 0x10001')
    a.I('s_and_b32 s37, s3, 1')
    a.I(f's_mul_i32 s38, s30, {8 * PSTR}')
    a.I('s_lshl_b32 s39, s31, 10')
    a.I('s_add_u32 s38, s38, s39')
    a.I('s_lshl_b32 s39, s37, 9')
    a.I('s_add_u32 s38, s38, s39')
    a.I(f's_add_u32 s38, s38, {L_PART}')
    a.I(f'v_lshrrev_b32 v{V_T0}, 1, v2')
    a.I(f'v_and_b32 v{V_T1}, 1, v2')
    a.I(f'v_mul_u32_u24 v{V_RED}, {4 * PSTR}, v{V_T1}')
    a.I(f'v_lshl_add_u32 v{V_RED}, v{V_T0}, 4, v{V_RED}')
    a.I(f'v_add_u32 v{V_RED}, s38, v{V_RED}')
    a.I('s_lshl_b32 s38, s30, 11')
    a.I(f's_add_u32 s38, s38, {L_LP}')
    a.I(f'v_lshlrev_b32 v{V_REDL}, 10, v{V_T1}')
    a.I(f'v_lshl_add_u32 v{V_REDL}, v{V_T0}, 2, v{V_REDL}')
    a.I(f'v_add_u32 v{V_REDL}, s38, v{V_REDL}')
    a.I('s_lshl_b32 s38, s30, 10')
    a.I('s_lshl_b32 s39, s31, 7')
    a.I('s_add_u32 s38, s38, s39')
    a.I('s_lshl_b32 s39, s37, 3')
    a.I('s_add_u32 s38, s38, s39')
    a.I(f's_add_u32 s38, s38, {L_OF}')
    a.I(f'v_lshrrev_b32 v{V_T1}, 3, v{V_T0}')
    a.I(f'v_and_b32 v{V_T0}, 7, v{V_T0}')
    a.I(f'v_lshlrev_b32 v{V_OFW}, 8, v{V_T1}')
    a.I(f'v_lshl_add_u32 v{V_OFW}, v{V_T0}, 4, v{V_OFW}')
    a.I(f'v_add_u32 v{V_OFW}, s38, v{V_OFW}')
    a.I(f'v_lshrrev_b32 v{V_T0}, 4, v2')
    a.I(f'v_and_b32 v{V_T1}, 7, v2')
    a.I(f'v_lshlrev_b32 v{V_FR}, 7, v{V_T0}')
    a.I(f'v_lshl_add_u32 v{V_FR}, v{V_T1}, 4, v{V_FR}')
    a.I('s_lshl_b32 s38, s3, 8')
    a.I(f's_add_u32 s38, s38, {L_QB}')
    a.I(f'v_lshl_add_u32 v{V_QW}, v{V_T1}, 5, s38')
    a.I(f'v_and_b32 v{V_T1}, 1, v{V_T0}')
    a.I(f'v_lshl_add_u32 v{V_QW}, v{V_T1}, 4, v{V_QW}')
    a.I(f'v_lshrrev_b32 v{V_T1}, 1, v{V_T0}')
    a.I(f'v_lshl_add_u32 v{V_QW}, v{V_T1}, 3, v{V_QW}')
    a.I(f'v_mov_b32 v{V_FM}, 0')
    for i in range(16):
        a.I(f'v_mov_b32 v{OACC + i}, 0')
    a.I(f'v_mov_b32 v{V_T0}, {L_FLAG}')
    a.I(f'ds_write_b32 v{V_T0}, v{V_FM}')
    a.I(f's_mov_b32 s42, {G["INV512"]:#x}')
    a.I(f's_mov_b32 s43, {G["EPS5"]:#x}')
    a.I(f's_mov_b32 s44, {G["QSCALE"]:#x}')
    a.I('s_mov_b32 s45, 0x17800000')
    a.I('s_mov_b32 s46, 0x71800000')
    a.I('s_mov_b32 s47, 0x7e800000')
    a.I('s_waitcnt vmcnt(40)')
    F = S1
    a.I('s_lshl_b32 s30, s3, 10')
    a.I(f'v_add_u32 v{V_T2}, s30, v{V_L16}')
    a.I(f'ds_write_b128 v{V_T2}, {vr(S0, 4)} offset:{L_XR}')
    for i in range(4):
        a.I(f'v_lshlrev_b32 v{F + 2 * i}, 16, v{S0 + i}')
        a.I(f'v_and_b32 v{F + 2 * i + 1}, 0xffff0000, v{S0 + i}')
    a.I(f'v_add_f32 v{V_T0}, v{F}, v{F + 1}')
    for i in range(2, 8):
        a.I(f'v_add_f32 v{V_T0}, v{V_T0}, v{F + i}')
    wave_sum(a, V_T0, V_T1)
    a.I(f'v_mul_f32 v{V_T0}, s42, v{V_T0}')
    for i in range(8):
        a.I(f'v_sub_f32 v{F + i}, v{F + i}, v{V_T0}')
    a.I(f'v_mul_f32 v{V_T0}, v{F}, v{F}')
    for i in range(1, 8):
        a.I(f'v_fmac_f32 v{V_T0}, v{F + i}, v{F + i}')
    wave_sum(a, V_T0, V_T1)
    a.I(f'v_mov_b32 v{V_T1}, s43')
    a.I(f'v_fmac_f32 v{V_T1}, s42, v{V_T0}')
    a.I(f'v_rsq_f32 v{V_T1}, v{V_T1}')
    for i in range(8):
        a.I(f'v_mul_f32 v{F + i}, v{F + i}, v{V_T1}')
    for i in range(4):
        a.I(f'v_cvt_pk_bf16_f32 v{S0 + 4 + i}, v{F + 2 * i}, v{F + 2 * i + 1}')
    a.I('s_lshl_b32 s30, s3, 4')
    a.I(f'v_lshl_add_u32 v{V_T2}, v2, 7, s30')
    a.I(f'ds_write_b128 v{V_T2}, {vr(S0 + 4, 4)} offset:{L_XN}')
    a.I('s_waitcnt lgkmcnt(0)')
    a.I('s_barrier')

    def qproj(vm):
        for t in range(8):
            a.I(f'ds_read_b128 {vr(S0 + 4 * t, 4)}, v{V_FR} offset:{L_XN + t * 512}')
        a.I(f's_waitcnt vmcnt({vm})')
        for t in range(16):
            a.I(f's_waitcnt lgkmcnt({min(7, 15 - t)})')
            a.I(f'v_mfma_f32_16x16x32_bf16 {vr(QA, 4)}, {vr(WBUF + 4 * t, 4)}, {vr(S0 + 4 * (t & 7), 4)}, {"0" if t == 0 else vr(QA, 4)}')
            if t + 8 < 16:
                a.I(f'ds_read_b128 {vr(S0 + 4 * (t & 7), 4)}, v{V_FR} offset:{L_XN + (t + 8) * 512}')
        for i in range(4):
            a.I(f'v_mul_f32 v{QA + i}, s44, v{QA + i}')
        a.I(f'v_cvt_pk_bf16_f32 v{QA}, v{QA}, v{QA + 1}')
        a.I(f'v_cvt_pk_bf16_f32 v{QA + 1}, v{QA + 2}, v{QA + 3}')
        a.I(f'ds_write_b64 v{V_QW}, {vr(QA, 2)}')
        a.I(f'v_add_u32 v{V_QW}, 2048, v{V_QW}')

    def outproj(addr):
        for tt in range(4):
            a.I(f'ds_read_b128 {vr(S0 + 4 * tt, 4)}, v{addr} offset:{L_OF + tt * 512}')
        a.I('s_waitcnt vmcnt(0)')
        for tt in range(4):
            a.I(f's_waitcnt lgkmcnt({3 - tt})')
            for nt in range(4):
                a.I(f'v_mfma_f32_16x16x32_bf16 {vr(OACC + 4 * nt, 4)}, {vr(WBUF + 16 * nt + 4 * tt, 4)}, {vr(S0 + 4 * tt, 4)}, {vr(OACC + 4 * nt, 4)}')

    def reduce(red, redl, ofw, fb):
        T, LL = S0, S0 + 16
        for u in range(4):
            a.I(f'ds_read_b128 {vr(T + 4 * u, 4)}, v{red} offset:{u * PSTR}')
            a.I(f'ds_read_b32 v{LL + u}, v{redl} offset:{u * 256}')
        a.I('s_waitcnt lgkmcnt(4)')
        a.I(f'v_pk_add_f32 {vr(T, 2)}, {vr(T, 2)}, {vr(T + 4, 2)}')
        a.I(f'v_pk_add_f32 {vr(T + 2, 2)}, {vr(T + 2, 2)}, {vr(T + 6, 2)}')
        a.I(f'v_add_f32 v{LL}, v{LL}, v{LL + 1}')
        a.I('s_waitcnt lgkmcnt(0)')
        a.I(f'v_pk_add_f32 {vr(T + 8, 2)}, {vr(T + 8, 2)}, {vr(T + 12, 2)}')
        a.I(f'v_pk_add_f32 {vr(T + 10, 2)}, {vr(T + 10, 2)}, {vr(T + 14, 2)}')
        a.I(f'v_add_f32 v{LL + 2}, v{LL + 2}, v{LL + 3}')
        a.I(f'v_pk_add_f32 {vr(T, 2)}, {vr(T, 2)}, {vr(T + 8, 2)}')
        a.I(f'v_add_f32 v{LL}, v{LL}, v{LL + 2}')
        a.I(f'v_pk_add_f32 {vr(T + 2, 2)}, {vr(T + 2, 2)}, {vr(T + 10, 2)}')
        for r in (LL, T, T + 1, T + 2, T + 3):
            a.I(f'v_add_f32_dpp v{r}, v{r}, v{r} quad_perm:[1,0,3,2] row_mask:0xf bank_mask:0xf')
        a.I(f'v_rcp_f32 v{LL + 1}, v{LL}')
        if not fb:
            a.I(f'v_max3_f32 v{LL + 2}, |v{T}|, |v{T + 1}|, |v{T + 2}|')
            a.I(f'v_max_f32 v{LL + 2}, |v{T + 3}|, v{LL + 2}')
            a.I(f'v_cmp_le_f32 s[50:51], s45, v{LL}')
            a.I(f'v_cmp_ge_f32 s[52:53], s46, v{LL}')
            a.I(f'v_cmp_gt_f32 s[54:55], s47, v{LL + 2}')
            a.I(f'v_add_f32 v{LL + 3}, v{T}, v{T + 1}')
            a.I(f'v_add_f32 v{LL + 2}, v{T + 2}, v{T + 3}')
            a.I(f'v_cmp_o_f32 s[56:57], v{LL + 3}, v{LL + 2}')
            a.I('s_and_b64 s[50:51], s[50:51], s[52:53]')
            a.I('s_and_b64 s[54:55], s[54:55], s[56:57]')
            a.I('s_and_b64 s[50:51], s[50:51], s[54:55]')
        else:
            a.I(f'v_and_b32 v{LL + 2}, s49, v{V_FM}')
            a.I(f'v_cmp_ne_u32 s[50:51], 0, v{LL + 2}')
        for i in range(4):
            a.I(f'v_mul_f32 v{T + i}, v{T + i}, v{LL + 1}')
        a.I(f'v_cvt_pk_bf16_f32 v{T}, v{T}, v{T + 1}')
        a.I(f'v_cvt_pk_bf16_f32 v{T + 1}, v{T + 2}, v{T + 3}')
        a.I(f'v_cndmask_b32 v{T}, 0, v{T}, s[50:51]')
        a.I(f'v_cndmask_b32 v{T + 1}, 0, v{T + 1}, s[50:51]')
        a.I(f'ds_write_b64 v{ofw}, {vr(T, 2)}')

    qproj(24)
    a.I('s_waitcnt lgkmcnt(0)')
    a.I('s_barrier')
    a.I('s_mov_b32 s28, 0')
    a.I('s_mov_b32 s49, 1')
    a.I(f'v_mov_b32 v{V_T2}, v{V_FR}')
    a.I(f's_add_u32 s58, s36, {WS_WQ + 8 * 16384:#x}')
    a.I('s_lshl_b32 s59, s3, 16')
    a.I(f's_add_u32 s59, s59, {WS_WOB:#x}')
    a.I('s_waitcnt vmcnt(0)')
    a.L(f'{P}_slot')
    a.I(f'ds_read_b128 {vr(QF, 4)}, v{V_QR}')
    a.I(f'v_add_u32 v{V_QR}, 1024, v{V_QR}')
    a.I('s_cmp_le_u32 s28, 2')
    a.I('s_cselect_b32 s30, s58, s59')
    a.I('s_movk_i32 s31, 4096')
    a.I('s_cselect_b32 s31, s31, 16384')
    a.I('s_cselect_b32 s37, 0x20000, 0')
    a.I('s_add_u32 s58, s58, s37')
    a.I('s_bitcmp1_b32 0xe8, s28')
    a.I('s_cselect_b32 s37, 4096, 0')
    a.I('s_add_u32 s59, s59, s37')
    a.I('s_cmp_eq_u32 s28, 4')
    a.I(f's_cselect_b32 s{SWL + 2}, 0, {WS_SIZE:#x}')
    a.I('s_waitcnt lgkmcnt(0)')
    a.I(f'v_mfma_f32_32x32x16_bf16 {vr(S0, 16)}, {vr(KREG, 4)}, {vr(QF, 4)}, 0')
    wl = [0]

    def wload(n):
        for _ in range(n):
            i = wl[0]
            if i >= 16: return
            a.I(f'buffer_load_dwordx4 {vr(WBUF + 4 * i, 4)}, v{V_L16}, s[{SWL}:{SWL + 3}], s30 offen offset:{(i & 3) * 1024}')
            if (i & 3) == 3 and i < 15:
                a.I('s_add_u32 s30, s30, s31')
            wl[0] += 1

    def E(s, r): a.I(f'v_exp_f32 v{s + r}, v{s + r}')

    def C(s, p): a.I(f'v_cvt_pk_bf16_f32 v{PB + p}, v{s + 2 * p}, v{s + 2 * p + 1}')

    def PV(i, mf):
        c = '0' if (i == 0 and mf == 0) else vr(OA, 16)
        a.I(f'v_mfma_f32_32x32x16_bf16 {vr(OA, 16)}, {vr(VREG + 8 * i + 4 * mf, 4)}, {vr(PB + 4 * mf, 4)}, {c}')

    for i in range(8):
        sc, sn = (S0, S1) if (i & 1) == 0 else (S1, S0)
        if i < 7:
            a.I(f'v_mfma_f32_32x32x16_bf16 {vr(sn, 16)}, {vr(KREG + 4 * (i + 1), 4)}, {vr(QF, 4)}, 0')
        wload(1)
        E(sc, 0); E(sc, 1)
        if i > 0: PV(i - 1, 1)
        for r in range(2, 8): E(sc, r)
        wload(1)
        C(sc, 0); C(sc, 1); E(sc, 8); E(sc, 9); C(sc, 2); C(sc, 3); E(sc, 10); E(sc, 11)
        PV(i, 0)
        wload(1)
        for r in range(12, 16): E(sc, r)
        C(sc, 4); C(sc, 5); C(sc, 6); C(sc, 7)
    PV(7, 1)
    a.I(f'ds_write_b128 v{V_PW}, {vr(OA, 4)}')
    a.I(f'ds_write_b128 v{V_PW}, {vr(OA + 4, 4)} offset:1024')
    a.I(f'ds_write_b32 v{V_LW}, v{OA + 8}')
    a.I('s_and_b32 s37, s28, 3')
    a.I('s_cmp_eq_u32 s37, 3')
    a.I(f's_mov_b32 s37, {8 * PSTR}')
    a.I(f's_cselect_b32 s37, {-24 * PSTR}, s37')
    a.I(f'v_add_u32 v{V_PW}, s37, v{V_PW}')
    a.I(f's_mov_b32 s37, 2048')
    a.I(f's_cselect_b32 s37, {-3 * 2048}, s37')
    a.I(f'v_add_u32 v{V_LW}, s37, v{V_LW}')
    a.I('s_cmp_gt_u32 s28, 2')
    a.I(f's_cbranch_scc1 {P}_bar')
    qproj(0)
    a.L(f'{P}_bar')
    a.I('s_bitcmp0_b32 0x1ea, s28')
    a.I(f's_cbranch_scc1 {P}_next')
    a.I('s_waitcnt lgkmcnt(0)')
    a.I('s_barrier')
    a.I('s_bitcmp0_b32 0x168, s28')
    a.I(f's_cbranch_scc1 {P}_noop')
    outproj(V_T2)
    a.I(f'v_add_u32 v{V_T2}, 2048, v{V_T2}')
    a.I('s_cmp_eq_u32 s28, 8')
    a.I(f's_cbranch_scc1 {P}_done')
    a.L(f'{P}_noop')
    a.I('s_bitcmp0_b32 s28, 0')
    a.I(f's_cbranch_scc1 {P}_next')
    reduce(V_RED, V_REDL, V_OFW, False)
    a.I('s_cmp_eq_u64 s[50:51], exec')
    a.I(f's_cbranch_scc1 {P}_rok')
    a.I(f'v_mov_b32 v{V_T0}, s49')
    a.I(f'v_cndmask_b32 v{V_T0}, v{V_T0}, 0, s[50:51]')
    a.I(f'v_or_b32 v{V_FM}, v{V_FM}, v{V_T0}')
    a.I(f'v_mov_b32 v{V_T1}, {L_FLAG}')
    a.I(f'ds_or_b32 v{V_T1}, v{V_T0}')
    a.L(f'{P}_rok')
    a.I('s_lshl_b32 s49, s49, 1')
    a.I(f'v_add_u32 v{V_OFW}, 2048, v{V_OFW}')
    a.I('s_bitcmp1_b32 s28, 1')
    a.I(f's_mov_b32 s37, {PBUF}')
    a.I(f's_cselect_b32 s37, {-PBUF}, s37')
    a.I(f'v_add_u32 v{V_RED}, s37, v{V_RED}')
    a.I(f's_mov_b32 s37, 4096')
    a.I(f's_cselect_b32 s37, -4096, s37')
    a.I(f'v_add_u32 v{V_REDL}, s37, v{V_REDL}')
    a.L(f'{P}_next')
    a.I('s_add_u32 s28, s28, 1')
    a.I('s_cmp_eq_u32 s28, 8')
    a.I(f's_cbranch_scc1 {P}_bar')
    a.I(f's_branch {P}_slot')
    a.L(f'{P}_done')
    a.I(f'v_mov_b32 v{V_T1}, {L_FLAG}')
    a.I(f'ds_read_b32 v{V_T0}, v{V_T1}')
    a.I(f'v_and_b32 v{S1 + 8}, 7, v2')
    a.I(f'v_lshrrev_b32 v{S1 + 9}, 4, v2')
    a.I(f'v_lshlrev_b32 v{S1 + 8}, 10, v{S1 + 8}')
    a.I(f'v_lshl_add_u32 v{S1 + 8}, v{S1 + 9}, 3, v{S1 + 8}')
    a.I('s_lshl_b32 s30, s3, 7')
    a.I(f'v_add_u32 v{V_QW}, s30, v{S1 + 8}')
    a.I('s_waitcnt lgkmcnt(0)')
    a.I(f'v_readfirstlane_b32 s48, v{V_T0}')
    a.I('s_cmp_lg_u32 s48, 0')
    a.I(f's_cbranch_scc1 {P}_fb')
    a.L(f'{P}_epi')
    for nt in range(4):
        a.I(f'ds_read_b64 {vr(S1 + 2 * nt, 2)}, v{V_QW} offset:{L_XR + 32 * nt}')
    a.I('s_lshl_b32 s30, s29, 13')
    a.I('s_mov_b32 s40, 0x00ff00ff')
    a.I('s_mov_b32 s41, 0x00ff00ff')
    a.I('s_waitcnt lgkmcnt(0)')
    for nt in range(4):
        for p in range(2):
            x = S1 + 2 * nt + p
            a.I(f'v_lshlrev_b32 v{V_T0}, 16, v{x}')
            a.I(f'v_and_b32 v{V_T1}, 0xffff0000, v{x}')
            a.I(f'v_add_f32 v{V_T0}, v{V_T0}, v{OACC + 4 * nt + 2 * p}')
            a.I(f'v_add_f32 v{V_T1}, v{V_T1}, v{OACC + 4 * nt + 2 * p + 1}')
            a.I(f'v_cvt_pk_bf16_f32 v{x}, v{V_T0}, v{V_T1}')
    a.I('s_mov_b64 exec, s[40:41]')
    for nt in range(4):
        a.I(f'buffer_store_dwordx2 {vr(S1 + 2 * nt, 2)}, v{V_QW}, s[{SOUT}:{SOUT + 3}], s30 offen offset:{32 * nt}')
    a.L(f'{P}_end')
    a.I('s_endpgm')

    a.L(f'{P}_fb')
    a.I(f'v_subrev_u32 v{V_QR}, 8192, v{V_QR}')
    a.I(f'v_subrev_u32 v{V_OFW}, 8192, v{V_OFW}')
    a.I(f'v_mov_b32 v{V_T2}, v{V_FR}')
    a.I('s_lshl_b32 s59, s3, 16')
    a.I(f's_add_u32 s59, s59, {WS_WOB:#x}')
    a.I('s_mov_b32 s49, 1')
    a.I('s_lshl_b32 s30, s3, 8')
    a.I(f's_add_u32 s30, s30, {L_MAX}')
    a.I(f'v_lshl_add_u32 v{QA}, v2, 2, s30')
    a.I(f'v_lshlrev_b32 v{QA + 1}, 2, v2')
    a.I(f'v_add_u32 v{QA + 1}, {L_MAX}, v{QA + 1}')
    a.L(f'{P}_fbg')
    a.I('s_and_b32 s37, s48, s49')
    a.I(f's_cbranch_scc0 {P}_fbn')
    a.I('s_barrier')
    a.I('s_mov_b32 s30, s59')
    for i in range(16):
        a.I(f'buffer_load_dwordx4 {vr(WBUF + 4 * i, 4)}, v{V_L16}, s[{SWS}:{SWS + 3}], s30 offen offset:{(i & 3) * 1024}')
        if (i & 3) == 3 and i < 15:
            a.I('s_add_u32 s30, s30, 16384')
    a.I('s_mov_b32 s37, 0')
    a.L(f'{P}_fb1')
    a.I(f'v_add_u32 v{V_T0}, s37, v{V_QR}')
    a.I(f'ds_read_b128 {vr(QF, 4)}, v{V_T0}')
    a.I(f'v_mov_b32 v{V_T1}, 0xff800000')
    a.I('s_waitcnt lgkmcnt(0)')
    for i in range(8):
        a.I(f'v_mfma_f32_32x32x16_bf16 {vr(S0, 16)}, {vr(KREG + 4 * i, 4)}, {vr(QF, 4)}, 0')
        for r in range(8):
            a.I(f'v_max3_f32 v{V_T1}, v{V_T1}, v{S0 + 2 * r}, v{S0 + 2 * r + 1}')
    a.I(f'v_mov_b32 v{V_T0}, v{V_T1}')
    a.I(f'v_permlane32_swap_b32 v{V_T1}, v{V_T0}')
    a.I(f'v_max_f32 v{V_T1}, v{V_T1}, v{V_T0}')
    a.I('s_lshl_b32 s38, s37, 1')
    a.I(f'v_add_u32 v{V_T0}, s38, v{QA}')
    a.I(f'ds_write_b32 v{V_T0}, v{V_T1}')
    a.I('s_add_u32 s37, s37, 1024')
    a.I('s_cmp_lt_u32 s37, 2048')
    a.I(f's_cbranch_scc1 {P}_fb1')
    a.I('s_waitcnt lgkmcnt(0)')
    a.I('s_barrier')
    a.I('s_mov_b32 s37, 0')
    a.L(f'{P}_fb2')
    a.I(f'v_add_u32 v{V_T0}, s37, v{V_QR}')
    a.I(f'ds_read_b128 {vr(QF, 4)}, v{V_T0}')
    a.I('s_lshl_b32 s38, s37, 1')
    a.I(f'v_add_u32 v{V_T0}, s38, v{QA + 1}')
    for w in range(8):
        a.I(f'ds_read_b32 v{S0 + w}, v{V_T0} offset:{w * 256}')
    a.I('s_waitcnt lgkmcnt(0)')
    a.I(f'v_max3_f32 v{V_T1}, v{S0}, v{S0 + 1}, v{S0 + 2}')
    a.I(f'v_max3_f32 v{V_T1}, v{V_T1}, v{S0 + 3}, v{S0 + 4}')
    a.I(f'v_max3_f32 v{V_T1}, v{V_T1}, v{S0 + 5}, v{S0 + 6}')
    a.I(f'v_max_f32 v{V_T1}, v{V_T1}, v{S0 + 7}')
    for r in range(16):
        a.I(f'v_sub_f32 v{S1 + r}, 0, v{V_T1}')
    for i in range(8):
        a.I(f'v_mfma_f32_32x32x16_bf16 {vr(S0, 16)}, {vr(KREG + 4 * i, 4)}, {vr(QF, 4)}, {vr(S1, 16)}')
        for r in range(16): E(S0, r)
        for p in range(8): C(S0, p)
        PV(i, 0); PV(i, 1)
    a.I(f's_mul_i32 s38, s37, {8 * PSTR // 1024 if (8 * PSTR) % 1024 == 0 else 0}' if False else '; ctl offsets')
    a.I('s_lshr_b32 s38, s37, 10')
    a.I(f's_mul_i32 s39, s38, {8 * PSTR}')
    a.I(f'v_add_u32 v{V_T0}, s39, v{V_PW}')
    a.I('s_lshl_b32 s39, s38, 11')
    a.I(f'v_add_u32 v{V_T1}, s39, v{V_LW}')
    a.I(f'ds_write_b128 v{V_T0}, {vr(OA, 4)}')
    a.I(f'ds_write_b128 v{V_T0}, {vr(OA + 4, 4)} offset:1024')
    a.I(f'ds_write_b32 v{V_T1}, v{OA + 8}')
    a.I('s_add_u32 s37, s37, 1024')
    a.I('s_cmp_lt_u32 s37, 2048')
    a.I(f's_cbranch_scc1 {P}_fb2')
    a.I('s_waitcnt lgkmcnt(0)')
    a.I('s_barrier')
    reduce(V_RED, V_REDL, V_OFW, True)
    a.I('s_waitcnt lgkmcnt(0)')
    a.I('s_barrier')
    outproj(V_T2)
    a.L(f'{P}_fbn')
    a.I(f'v_add_u32 v{V_QR}, 2048, v{V_QR}')
    a.I(f'v_add_u32 v{V_OFW}, 2048, v{V_OFW}')
    a.I(f'v_add_u32 v{V_T2}, 2048, v{V_T2}')
    a.I('s_add_u32 s59, s59, 4096')
    a.I('s_lshl_b32 s49, s49, 1')
    a.I('s_cmp_lt_u32 s49, 16')
    a.I(f's_cbranch_scc1 {P}_fbg')
    a.I(f's_branch {P}_epi')
    kernels.append((label, 256, 64))
```

```python
import sys
from asmlib import Asm, vr, sr

NAME = 'interleave_layers__linear_attn_block__grouped_kv_mqa__prompt'

WS_PQ = 0x000000
WS_X1 = 0x200000
WS_X2 = 0x400000
WS_X3 = 0x600000
WS_WOA = 0x800000
WS_WQ = 0x880000
WS_WOB = 0x900000
WS_WKV = 0x980000
WS_KB = 0x990000
WS_VB = 0x9A0000
WS_KVP = 0x9B0000
WS_KVF = 0xA40000
WS_SIZE = 0xB00000

KA_AX, KA_WQKV, KA_WOA, KA_BX, KA_WQ, KA_WK, KA_WV, KA_WOB, KA_OUT, KA_DBG, KA_WS = [8 * i for i in range(11)]

LOG2E = 0x3fb8aa3b
ONES = 0x3f803f80
EPS6 = 0x358637bd
EPS5 = 0x3727c5ac
INV512 = 0x3b000000
QSCALE = 0x3eb8aa3b

kernels = []


def khead(a, label):
    a.T(f'.globl {label}')
    a.T('.p2align 8')
    a.T(f'.type {label},@function')
    a.L(label)


def srd(a, d, base, size, add=0):
    if add:
        a.I(f's_add_u32 s{d}, s{base}, {add:#x}')
        a.I(f's_addc_u32 s{d + 1}, s{base + 1}, 0')
    else:
        a.I(f's_mov_b32 s{d}, s{base}')
        a.I(f's_mov_b32 s{d + 1}, s{base + 1}')
    a.I(f's_mov_b32 s{d + 2}, {size:#x}')
    a.I(f's_mov_b32 s{d + 3}, 0x20000')


def xsum(a, x, t, levels=(16, 32)):
    for lv in levels:
        a.I(f'v_mov_b32 v{t}, v{x}')
        a.I(f'v_permlane{lv}_swap_b32 v{x}, v{t}')
        a.I(f'v_add_f32 v{x}, v{x}, v{t}')


NPREP = 98
K1_LDS_W = 0
K1_LDS_ST = 98304
K1_LDS_KV = 98304 + 2048
K1_LDS_FLAG = K1_LDS_KV + 4 * 2176
K1_LDS = K1_LDS_FLAG + 64


def gen_k1(a, label, first):
    khead(a, label)
    P = label[:3]
    nwg = 256 + (NPREP if first else 0)
    a.I(f's_cmp_ge_u32 s2, {nwg}')
    a.I(f's_cbranch_scc1 {P}_end')
    a.I(f's_load_dwordx4 s[4:7], s[0:1], {KA_AX}')
    a.I(f's_load_dwordx4 s[8:11], s[0:1], {KA_DBG}')
    if first:
        a.I(f's_load_dwordx2 s[40:41], s[0:1], {KA_WOA}')
        a.I(f's_load_dwordx8 s[44:51], s[0:1], {KA_WQ}')
    a.I('v_lshrrev_b32 v1, 6, v0')
    a.I('v_and_b32 v2, 63, v0')
    a.I('v_readfirstlane_b32 s3, v1')
    a.I('s_waitcnt lgkmcnt(0)')
    SX, SW, SWS, SDBG = 12, 16, 20, 24
    if first:
        srd(a, SX, 4, 0x200000)
    else:
        srd(a, SX, 10, 0x200000, WS_X2)
    srd(a, SW, 6, 0x180000)
    srd(a, SWS, 10, WS_SIZE)
    srd(a, SDBG, 8, 256)
    if first:
        a.I('s_cmp_ge_u32 s2, 256')
        a.I(f's_cbranch_scc1 {P}_prep')
    a.I('s_and_b32 s28, s2, 7')
    a.I('s_lshl_b32 s28, s28, 1')
    a.I('s_bfe_u32 s29, s2, 0x10003')
    a.I('s_add_u32 s28, s28, s29')
    a.I('s_lshr_b32 s29, s2, 4')
    a.I('s_lshl_b32 s30, s28, 17')
    a.I('s_lshl_b32 s31, s3, 15')
    a.I('s_add_u32 s30, s30, s31')
    a.I('v_and_b32 v3, 31, v2')
    a.I('v_lshrrev_b32 v4, 5, v2')
    a.I('v_lshlrev_b32 v5, 10, v3')
    a.I('v_lshl_add_u32 v5, v4, 4, v5')
    a.I('v_lshrrev_b32 v6, 2, v2')
    a.I('v_mul_u32_u24 v6, 3072, v6')
    a.I('v_and_b32 v7, 3, v2')
    a.I('v_lshl_add_u32 v6, v7, 4, v6')
    a.I('s_mul_i32 s31, s3, 98304')
    a.I('s_lshl_b32 s32, s29, 6')
    a.I('s_add_u32 s31, s31, s32')
    a.I('s_mul_i32 s32, s3, 6144')
    X = 16
    ACC = [144, 160, 176]
    WF = 192
    SUM, SQ = 216, 217
    CS = [218, 219, 220]
    ON = 224
    for c in range(4):
        for u in range(2):
            a.I(f's_add_u32 s33, s31, {(128 * c + 16 * u) * 3072}')
            a.I(f's_add_u32 m0, s32, {(8 * c + u) * 3072}')
            for sub in range(3):
                a.I(f'buffer_load_dwordx4 v6, s[{SW}:{SW + 3}], s33 offen offset:{sub * 1024} lds')
        for t in range(8 * c, 8 * c + 8):
            a.I(f'buffer_load_dwordx4 {vr(X + 4 * t, 4)}, v5, s[{SX}:{SX + 3}], s30 offen offset:{t * 32}')
    a.I('v_bfe_u32 v7, v2, 2, 2')
    a.I('v_lshl_add_u32 v7, v4, 3, v7')
    a.I('v_lshlrev_b32 v7, 6, v7')
    a.I('v_bfe_u32 v8, v2, 4, 1')
    a.I('v_lshl_add_u32 v7, v8, 5, v7')
    a.I('v_and_b32 v8, 3, v2')
    a.I('v_lshl_add_u32 v7, v8, 3, v7')
    a.I('v_add_u32 v8, 49152, v7')
    for i in range(4):
        a.I(f'v_mov_b32 v{ON + i}, {ONES:#x}')
    for r in (SUM, SQ, *CS):
        a.I(f'v_mov_b32 v{r}, 0')

    def trreads(t):
        b = WF + 12 * (t & 1)
        base = t * 3072
        av = 'v7' if base < 49152 else 'v8'
        off = base if base < 49152 else base - 49152
        for sub in range(3):
            a.I(f'ds_read_b64_tr_b16 {vr(b + 4 * sub, 2)}, {av} offset:{off + sub * 1024}')
            a.I(f'ds_read_b64_tr_b16 {vr(b + 4 * sub + 2, 2)}, {av} offset:{off + sub * 1024 + 256}')

    for c in range(4):
        a.I(f's_waitcnt vmcnt({14 * (3 - c)})')
        a.I('s_barrier')
        trreads(8 * c)
        for t in range(8 * c, 8 * c + 8):
            if t + 1 < 8 * c + 8:
                trreads(t + 1)
                a.I('s_waitcnt lgkmcnt(6)')
            else:
                a.I('s_waitcnt lgkmcnt(0)')
            b = WF + 12 * (t & 1)
            x = X + 4 * t
            cc = lambda i: '0' if t == 0 else vr(ACC[i], 16)
            a.I(f'v_mfma_f32_32x32x16_bf16 {vr(ACC[0], 16)}, {vr(b, 4)}, {vr(x, 4)}, {cc(0)}')
            for i in range(4):
                a.I(f'v_dot2c_f32_bf16 v{SUM}, v{x + i}, v{ON}')
                a.I(f'v_dot2c_f32_bf16 v{CS[0]}, v{b + i}, v{ON}')
            a.I(f'v_mfma_f32_32x32x16_bf16 {vr(ACC[1], 16)}, {vr(x, 4)}, {vr(b + 4, 4)}, {cc(1)}')
            for i in range(4):
                a.I(f'v_dot2c_f32_bf16 v{SQ}, v{x + i}, v{x + i}')
                a.I(f'v_dot2c_f32_bf16 v{CS[1]}, v{b + 4 + i}, v{ON}')
            a.I(f'v_mfma_f32_32x32x16_bf16 {vr(ACC[2], 16)}, {vr(x, 4)}, {vr(b + 8, 4)}, {cc(2)}')
            for i in range(4):
                a.I(f'v_dot2c_f32_bf16 v{CS[2]}, v{b + 8 + i}, v{ON}')
    for r in (SUM, SQ, *CS):
        xsum(a, r, 9, levels=(32,))
    a.I(f's_mov_b32 s34, {INV512:#x}')
    a.I(f's_mov_b32 s35, {EPS5:#x}')
    a.I(f's_mov_b32 s36, {LOG2E:#x}')
    a.I(f's_mov_b32 s37, {EPS6:#x}')
    MU, RS = 10, 11
    a.I(f'v_mul_f32 v{MU}, s34, v{SUM}')
    a.I(f'v_mul_f32 v{RS}, s34, v{SQ}')
    a.I(f'v_fma_f32 v{RS}, -v{MU}, v{MU}, v{RS}')
    a.I(f'v_max_f32 v{RS}, 0, v{RS}')
    a.I(f'v_add_f32 v{RS}, s35, v{RS}')
    a.I(f'v_rsq_f32 v{RS}, v{RS}')
    a.I(f's_lshl_b32 s38, s3, 9')
    a.I(f's_add_u32 s38, s38, {K1_LDS_ST}')
    a.I('v_lshl_add_u32 v12, v3, 2, s38')
    a.I(f'ds_write_b32 v12, v{MU}')
    a.I(f'ds_write_b32 v12, v{RS} offset:128')
    a.I(f'ds_write_b32 v12, v{CS[0]} offset:256')
    a.I('v_lshl_add_u32 v13, v4, 4, s38')
    MUR, RSR, CQR = 16, 32, 48
    a.I('s_waitcnt lgkmcnt(0)')
    for g in range(4):
        a.I(f'ds_read_b128 {vr(MUR + 4 * g, 4)}, v13 offset:{32 * g}')
        a.I(f'ds_read_b128 {vr(RSR + 4 * g, 4)}, v13 offset:{128 + 32 * g}')
    for g in range(4):
        a.I(f'ds_read_b128 {vr(CQR + 4 * g, 4)}, v13 offset:{256 + 32 * g}')
    a.I('s_waitcnt lgkmcnt(4)')
    T1, T2 = 64, 80
    PK, PV = 96, 104
    for r in range(16):
        k = ACC[1] + r
        v = ACC[2] + r
        a.I(f'v_fma_f32 v{k}, -v{MUR + r}, v{CS[1]}, v{k}')
        a.I(f'v_fma_f32 v{v}, -v{MUR + r}, v{CS[2]}, v{v}')
        a.I(f'v_mul_f32 v{k}, v{k}, v{RSR + r}')
        a.I(f'v_mul_f32 v{v}, v{v}, v{RSR + r}')
        a.I(f'v_mul_f32 v{T2 + r}, s36, v{k}')
        a.I(f'v_add_f32 v{k}, 1.0, v{k}')
        a.I(f'v_exp_f32 v{T2 + r}, v{T2 + r} clamp')
    for r in range(16):
        k = ACC[1] + r
        a.I(f'v_max_f32 v{k}, v{k}, v{T2 + r}')
        a.I(f'v_add_f32 v{k}, s37, v{k}')
    for i in range(8):
        a.I(f'v_cvt_pk_bf16_f32 v{PK + i}, v{ACC[1] + 2 * i}, v{ACC[1] + 2 * i + 1}')
        a.I(f'v_cvt_pk_bf16_f32 v{PV + i}, v{ACC[2] + 2 * i}, v{ACC[2] + 2 * i + 1}')
    DKV, DZ = 112, 128
    a.I(f'v_mfma_f32_32x32x16_bf16 {vr(DKV, 16)}, {vr(PK, 4)}, {vr(PV, 4)}, 0')
    a.I(f'v_mfma_f32_32x32x16_bf16 {vr(DZ, 16)}, {vr(PK, 4)}, {vr(ON, 4)}, 0')
    a.I(f'v_mfma_f32_32x32x16_bf16 {vr(DKV, 16)}, {vr(PK + 4, 4)}, {vr(PV + 4, 4)}, {vr(DKV, 16)}')
    a.I(f'v_mfma_f32_32x32x16_bf16 {vr(DZ, 16)}, {vr(PK + 4, 4)}, {vr(ON, 4)}, {vr(DZ, 16)}')
    a.I(f's_mul_i32 s38, s3, 2176')
    a.I(f's_add_u32 s38, s38, {K1_LDS_KV}')
    a.I('v_and_b32 v12, 15, v2')
    a.I('v_lshlrev_b32 v12, 6, v12')
    a.I('v_lshl_add_u32 v12, v4, 5, v12')
    a.I('v_add_u32 v12, s38, v12')
    a.I('s_mov_b32 s42, 0x0000ffff')
    a.I('s_mov_b32 s43, 0x0000ffff')
    a.I('s_mov_b64 exec, s[42:43]')
    a.I(f'ds_write_b128 v12, {vr(DKV, 4)}')
    a.I(f'ds_write_b128 v12, {vr(DKV + 4, 4)} offset:16')
    a.I('s_not_b64 exec, s[42:43]')
    a.I(f'ds_write_b128 v12, {vr(DKV + 8, 4)} offset:1088')
    a.I(f'ds_write_b128 v12, {vr(DKV + 12, 4)} offset:{1088 + 16}')
    a.I('s_mov_b32 s42, 1')
    a.I('s_mov_b32 s43, 1')
    a.I('s_mov_b64 exec, s[42:43]')
    a.I(f'ds_write_b128 v12, {vr(DZ, 4)} offset:1024')
    a.I(f'ds_write_b128 v12, {vr(DZ + 4, 4)} offset:{1024 + 16}')
    a.I(f'ds_write_b128 v12, {vr(DZ + 8, 4)} offset:{1088 + 1024}')
    a.I(f'ds_write_b128 v12, {vr(DZ + 12, 4)} offset:{1088 + 1024 + 16}')
    a.I('s_mov_b64 exec, -1')
    a.I('s_waitcnt lgkmcnt(0)')
    a.I('s_barrier')
    a.I('v_lshlrev_b32 v12, 4, v0')
    a.I('s_mul_i32 s38, s29, 34816')
    a.I('s_mul_i32 s39, s28, 2176')
    a.I('s_add_u32 s39, s39, s38')
    a.I(f's_add_u32 s39, s39, {WS_KVP:#x}')
    a.I(f's_add_u32 s38, s38, {WS_KVP:#x}')
    a.I('v_cmp_gt_u32 vcc, 136, v0')
    a.I('s_and_saveexec_b64 s[42:43], vcc')
    a.I(f's_cbranch_execz {P}_nopub')
    a.I(f'v_add_u32 v14, {K1_LDS_KV}, v12')
    for w in range(4):
        a.I(f'ds_read_b128 {vr(64 + 4 * w, 4)}, v14 offset:{2176 * w}')
    a.I('s_waitcnt lgkmcnt(0)')
    for i in range(4):
        a.I(f'v_add_f32 v{64 + i}, v{64 + i}, v{68 + i}')
        a.I(f'v_add_f32 v{72 + i}, v{72 + i}, v{76 + i}')
    for i in range(4):
        a.I(f'v_add_f32 v{64 + i}, v{64 + i}, v{72 + i}')
    a.I(f'buffer_store_dwordx4 v[64:67], v12, s[{SWS}:{SWS + 3}], s39 offen sc1')
    a.L(f'{P}_nopub')
    a.I('s_mov_b64 exec, -1')
    a.I('s_waitcnt vmcnt(0)')
    a.I('s_barrier')
    a.I('v_mov_b32 v14, 1')
    a.I('v_mov_b32 v15, 0')
    a.I('s_lshl_b32 s33, s29, 2')
    a.I('v_cmp_eq_u32 vcc, 0, v0')
    a.I('s_and_saveexec_b64 s[42:43], vcc')
    a.I(f's_cbranch_execz {P}_noatom')
    a.I(f'buffer_atomic_add v14, v15, s[{SDBG}:{SDBG + 3}], s33 offen sc0 sc1')
    a.L(f'{P}_noatom')
    a.I('s_mov_b64 exec, -1')
    for r in range(16):
        q = ACC[0] + r
        a.I(f'v_fma_f32 v{q}, -v{MU}, v{CQR + r}, v{q}')
        a.I(f'v_mul_f32 v{q}, v{q}, v{RS}')
        a.I(f'v_mul_f32 v{T2 + r}, s36, v{q}')
        a.I(f'v_add_f32 v{q}, 1.0, v{q}')
        a.I(f'v_exp_f32 v{T2 + r}, v{T2 + r} clamp')
    for r in range(16):
        q = ACC[0] + r
        a.I(f'v_max_f32 v{q}, v{q}, v{T2 + r}')
        a.I(f'v_add_f32 v{q}, s37, v{q}')
    for i in range(8):
        a.I(f'v_cvt_pk_bf16_f32 v{PK + i}, v{ACC[0] + 2 * i}, v{ACC[0] + 2 * i + 1}')
    a.I('s_lshl_b32 s30, s28, 2')
    a.I('s_add_u32 s30, s30, s3')
    a.I('s_lshl_b32 s30, s30, 15')
    a.I('s_lshl_b32 s31, s29, 11')
    a.I('s_add_u32 s30, s30, s31')
    a.I('v_lshlrev_b32 v13, 4, v2')
    a.I('s_waitcnt vmcnt(0)')
    a.I(f'buffer_store_dwordx4 {vr(PK, 4)}, v13, s[{SWS}:{SWS + 3}], s30 offen')
    a.I(f'buffer_store_dwordx4 {vr(PK + 4, 4)}, v13, s[{SWS}:{SWS + 3}], s30 offen offset:1024')
    a.I(f'v_mov_b32 v15, {K1_LDS_FLAG}')
    a.I('v_cmp_eq_u32 vcc, 0, v0')
    a.I('s_and_saveexec_b64 s[42:43], vcc')
    a.I('ds_write_b32 v15, v14')
    a.I('s_mov_b64 exec, -1')
    a.I('s_waitcnt lgkmcnt(0)')
    a.I('s_barrier')
    a.I('ds_read_b32 v14, v15')
    a.I('s_waitcnt lgkmcnt(0)')
    a.I('v_readfirstlane_b32 s33, v14')
    a.I('s_cmp_lg_u32 s33, 15')
    a.I(f's_cbranch_scc1 {P}_end')
    a.I('v_cmp_gt_u32 vcc, 136, v0')
    a.I('s_and_saveexec_b64 s[42:43], vcc')
    a.I(f's_cbranch_execz {P}_end')
    for rb in range(16):
        a.I(f'buffer_load_dwordx4 {vr(16 + 4 * rb, 4)}, v12, s[{SWS}:{SWS + 3}], s38 offen sc1')
        if rb < 15:
            a.I('s_add_u32 s38, s38, 2176')
    for st in range(4):
        n = 16 >> st
        if st == 0:
            a.I('s_waitcnt vmcnt(0)')
        for j in range(n // 2):
            for i in range(4):
                a.I(f'v_add_f32 v{16 + 4 * j + i}, v{16 + 4 * j + i}, v{16 + 4 * (j + n // 2) + i}')
    a.I('v_cvt_pk_bf16_f32 v16, v16, v17')
    a.I('v_cvt_pk_bf16_f32 v17, v18, v19')
    a.I('v_lshlrev_b32 v12, 3, v0')
    a.I('s_mul_i32 s38, s29, 1088')
    a.I(f's_add_u32 s38, s38, {WS_KVF:#x}')
    a.I(f'buffer_store_dwordx2 v[16:17], v12, s[{SWS}:{SWS + 3}], s38 offen')
    a.L(f'{P}_end')
    a.I('s_endpgm')
    if first:
        gen_prep(a, P, SWS)
    kernels.append((label, 228, 56))


def gen_prep(a, P, SWS):
    a.L(f'{P}_prep')
    a.I('s_sub_u32 s28, s2, 256')
    a.I('s_and_b32 s29, s28, 31')
    a.I('s_lshl_b32 s29, s29, 4')
    a.I('s_lshl_b32 s30, s3, 2')
    a.I('s_add_u32 s29, s29, s30')
    a.I('s_lshr_b32 s28, s28, 5')
    a.I('v_lshlrev_b32 v13, 4, v2')
    SS = 52
    a.I('s_cmp_eq_u32 s28, 0')
    a.I(f's_cbranch_scc1 {P}_pwoa')
    a.I('s_cmp_eq_u32 s28, 3')
    a.I(f's_cbranch_scc1 {P}_pwkv')
    a.I('s_cmp_eq_u32 s28, 1')
    a.I('s_cselect_b32 s52, s44, s50')
    a.I('s_cselect_b32 s53, s45, s51')
    a.I('s_mov_b32 s54, 0x80000')
    a.I('s_mov_b32 s55, 0x20000')
    a.I(f's_mov_b32 s31, {WS_WQ:#x}')
    a.I(f's_mov_b32 s32, {WS_WOB:#x}')
    a.I('s_cselect_b32 s31, s31, s32')
    a.I('v_and_b32 v3, 15, v2')
    a.I('v_lshrrev_b32 v4, 4, v2')
    a.I('v_lshlrev_b32 v4, 13, v4')
    a.I('v_lshl_add_u32 v4, v3, 1, v4')
    a.I('v_add_u32 v5, 4096, v4')
    a.I('s_and_b32 s32, s29, 15')
    a.I('s_lshl_b32 s32, s32, 15')
    a.I('s_lshr_b32 s33, s29, 4')
    a.I('s_lshl_b32 s33, s33, 5')
    a.I('s_add_u32 s32, s32, s33')
    for u in range(4):
        for j in range(8):
            av = 'v4' if j < 4 else 'v5'
            a.I(f'buffer_load_ushort v{16 + 16 * (j & 1) + 4 * u + j // 2}, {av}, s[{SS}:{SS + 3}], s32 offen offset:{(j & 3) * 1024}')
        if u < 3:
            a.I('s_add_u32 s32, s32, 0x8000')
    a.I(f's_branch {P}_pstore')
    a.L(f'{P}_pwoa')
    a.I('s_mov_b32 s52, s40')
    a.I('s_mov_b32 s53, s41')
    a.I('s_mov_b32 s54, 0x80000')
    a.I('s_mov_b32 s55, 0x20000')
    a.I(f's_mov_b32 s31, {WS_WOA:#x}')
    a.I('v_and_b32 v3, 31, v2')
    a.I('v_lshrrev_b32 v4, 5, v2')
    a.I('v_lshlrev_b32 v4, 12, v4')
    a.I('v_lshl_add_u32 v4, v3, 1, v4')
    a.I('v_add_u32 v5, 8192, v4')
    a.I('s_and_b32 s32, s29, 31')
    a.I('s_lshl_b32 s32, s32, 14')
    a.I('s_lshr_b32 s33, s29, 5')
    a.I('s_lshl_b32 s33, s33, 6')
    a.I('s_add_u32 s32, s32, s33')
    for u in range(4):
        for j in range(8):
            av = 'v4' if j < 4 else 'v5'
            a.I(f'buffer_load_ushort v{16 + 16 * (j & 1) + 4 * u + j // 2}, {av}, s[{SS}:{SS + 3}], s32 offen offset:{(j & 3) * 1024}')
        if u < 3:
            a.I('s_add_u32 s32, s32, 0x4000')
    a.I(f's_branch {P}_pstore')
    a.L(f'{P}_pwkv')
    a.I('s_cmp_lt_u32 s29, 16')
    a.I('s_cselect_b32 s52, s46, s48')
    a.I('s_cselect_b32 s53, s47, s49')
    a.I('s_mov_b32 s54, 0x4000')
    a.I('s_mov_b32 s55, 0x20000')
    a.I(f's_mov_b32 s31, {WS_WKV:#x}')
    a.I('v_and_b32 v3, 15, v2')
    a.I('v_lshrrev_b32 v4, 4, v2')
    a.I('v_lshlrev_b32 v4, 8, v4')
    a.I('v_lshl_add_u32 v4, v3, 1, v4')
    a.I('s_and_b32 s32, s29, 15')
    a.I('s_lshl_b32 s32, s32, 10')
    for u in range(4):
        for j in range(8):
            a.I(f'buffer_load_ushort v{16 + 16 * (j & 1) + 4 * u + j // 2}, v4, s[{SS}:{SS + 3}], s32 offen offset:{u * 1024 + j * 32}')
    a.L(f'{P}_pstore')
    a.I('s_lshl_b32 s29, s29, 10')
    a.I('s_add_u32 s31, s31, s29')
    for u in range(4):
        a.I(f's_waitcnt vmcnt({8 * (3 - u) + u})')
        for i in range(4):
            a.I(f'v_lshl_or_b32 v{16 + 4 * u + i}, v{32 + 4 * u + i}, 16, v{16 + 4 * u + i}')
        a.I(f'buffer_store_dwordx4 {vr(16 + 4 * u, 4)}, v13, s[{SWS}:{SWS + 3}], s31 offen offset:{u * 1024}')
    a.I('s_endpgm')


K2_LDS = 32768


def gen_k2(a, label, first):
    khead(a, label)
    P = label[:3]
    a.I('s_cmp_ge_u32 s2, 256')
    a.I(f's_cbranch_scc1 {P}_end')
    a.I(f's_load_dwordx2 s[4:5], s[0:1], {KA_AX}')
    a.I(f's_load_dwordx2 s[10:11], s[0:1], {KA_WS}')
    a.I('v_lshrrev_b32 v1, 6, v0')
    a.I('v_and_b32 v2, 63, v0')
    a.I('v_readfirstlane_b32 s3, v1')
    a.I('s_waitcnt lgkmcnt(0)')
    SX, SWS = 12, 20
    if first:
        srd(a, SX, 4, 0x200000)
    else:
        srd(a, SX, 10, 0x200000, WS_X2)
    srd(a, SWS, 10, WS_SIZE)
    a.I('s_and_b32 s28, s2, 7')
    a.I('s_lshl_b32 s28, s28, 3')
    a.I('s_bfe_u32 s29, s2, 0x30003')
    a.I('s_add_u32 s28, s28, s29')
    a.I('s_lshr_b32 s29, s2, 6')
    PQ, KV, WO, XR = 16, 48, 80, 208
    D0 = 216
    a.I('v_lshlrev_b32 v3, 4, v2')
    a.I('s_lshl_b32 s30, s28, 15')
    a.I('s_lshl_b32 s31, s3, 13')
    a.I('s_add_u32 s30, s30, s31')
    a.I('s_add_u32 s31, s30, 4096')
    a.I('v_and_b32 v4, 31, v2')
    a.I('v_lshrrev_b32 v5, 5, v2')
    a.I('v_min_u32 v6, 16, v4')
    a.I('v_lshlrev_b32 v6, 5, v6')
    a.I('v_lshl_add_u32 v6, v5, 4, v6')
    a.I('s_mul_i32 s32, s3, 4352')
    a.I(f's_add_u32 s32, s32, {WS_KVF:#x}')
    for i in range(8):
        a.I(f'buffer_load_dwordx4 {vr(PQ + 4 * i, 4)}, v3, s[{SWS}:{SWS + 3}], {"s30" if i < 4 else "s31"} offen offset:{(i & 3) * 1024}')
        a.I(f'buffer_load_dwordx4 {vr(KV + 4 * i, 4)}, v6, s[{SWS}:{SWS + 3}], s32 offen offset:{i * 544}')
    a.I('s_lshl_b32 s33, s29, 2')
    a.I('s_add_u32 s33, s33, s3')
    a.I('s_lshl_b32 s34, s33, 15')
    a.I(f's_add_u32 s34, s34, {WS_WOA:#x}')
    for h in range(32):
        a.I(f'buffer_load_dwordx4 {vr(WO + 4 * h, 4)}, v3, s[{SWS}:{SWS + 3}], s34 offen offset:{(h & 3) * 1024}')
        if (h & 3) == 3 and h < 31:
            a.I('s_add_u32 s34, s34, 4096')
    a.I('v_lshlrev_b32 v7, 10, v4')
    a.I('v_lshl_add_u32 v7, v5, 3, v7')
    a.I('s_lshl_b32 s35, s28, 15')
    a.I('s_lshl_b32 s36, s33, 6')
    a.I('s_add_u32 s35, s35, s36')
    for g in range(4):
        a.I(f'buffer_load_dwordx2 {vr(XR + 2 * g, 2)}, v7, s[{SX}:{SX + 3}], s35 offen offset:{16 * g}')
    a.I(f's_mov_b32 s37, {EPS6:#x}')
    a.I('s_lshl_b32 s36, s3, 13')
    a.I('v_add_u32 v8, s36, v3')
    def pa_mfma(i):
        a.I(f's_waitcnt vmcnt({36 + 2 * (7 - i)})')
        a.I(f'v_mfma_f32_32x32x16_bf16 {vr(D0 + 16 * (i & 1), 16)}, {vr(KV + 4 * i, 4)}, {vr(PQ + 4 * i, 4)}, 0')
    pa_mfma(0)
    for i in range(8):
        if i < 7:
            pa_mfma(i + 1)
        d = D0 + 16 * (i & 1)
        a.I(f'v_add_f32 v9, s37, v{d + 8}')
        a.I('v_rcp_f32 v9, v9')
        for r in range(8):
            a.I(f'v_mul_f32 v{d + r}, v{d + r}, v9')
        for r in range(4):
            a.I(f'v_cvt_pk_bf16_f32 v{PQ + 4 * i + r}, v{d + 2 * r}, v{d + 2 * r + 1}')
        a.I(f'ds_write_b128 v8, {vr(PQ + 4 * i, 4)} offset:{i * 1024}')
    a.I('s_waitcnt lgkmcnt(0)')
    a.I('s_barrier')
    OFR = 16
    for h in range(8):
        a.I(f'ds_read_b128 {vr(OFR + 4 * h, 4)}, v3 offset:{h * 1024}')
    for h in range(32):
        if h + 8 < 32:
            a.I(f'ds_read_b128 {vr(OFR + 4 * ((h + 8) & 15), 4)}, v3 offset:{(h + 8) * 1024}')
        a.I(f's_waitcnt vmcnt({4 + 31 - h}) lgkmcnt({min(8, 31 - h)})')
        a.I(f'v_mfma_f32_32x32x16_bf16 {vr(D0, 16)}, {vr(WO + 4 * h, 4)}, {vr(OFR + 4 * (h & 15), 4)}, {"0" if h == 0 else vr(D0, 16)}')
    a.I('s_waitcnt vmcnt(0)')
    dst = WS_X1 if first else WS_X3
    a.I(f's_add_u32 s35, s35, {dst:#x}')
    for g in range(4):
        x = XR + 2 * g
        for p in range(2):
            a.I(f'v_lshlrev_b32 v9, 16, v{x + p}')
            a.I(f'v_and_b32 v10, 0xffff0000, v{x + p}')
            a.I(f'v_add_f32 v9, v9, v{D0 + 4 * g + 2 * p}')
            a.I(f'v_add_f32 v10, v10, v{D0 + 4 * g + 2 * p + 1}')
            a.I(f'v_cvt_pk_bf16_f32 v{x + p}, v9, v10')
        a.I(f'buffer_store_dwordx2 {vr(x, 2)}, v7, s[{SWS}:{SWS + 3}], s35 offen offset:{16 * g}')
    a.L(f'{P}_end')
    a.I('s_endpgm')
    kernels.append((label, 248, 40))


K3_LDS = 4096


def gen_k3(a, label, first):
    khead(a, label)
    P = label[:3]
    a.I('s_cmp_ge_u32 s2, 128')
    a.I(f's_cbranch_scc1 {P}_end')
    a.I(f's_load_dwordx2 s[10:11], s[0:1], {KA_WS}')
    a.I('v_lshrrev_b32 v1, 6, v0')
    a.I('v_and_b32 v2, 63, v0')
    a.I('v_readfirstlane_b32 s3, v1')
    a.I('s_waitcnt lgkmcnt(0)')
    SWS = 20
    srd(a, SWS, 10, WS_SIZE)
    src = WS_X1 if first else WS_X3
    a.I('s_and_b32 s28, s2, 7')
    a.I('s_lshl_b32 s28, s28, 4')
    a.I('s_lshr_b32 s29, s2, 3')
    a.I('s_add_u32 s28, s28, s29')
    a.I('s_and_b32 s29, s3, 1')
    a.I('s_lshr_b32 s30, s3, 1')
    a.I('v_and_b32 v3, 15, v2')
    a.I('v_lshrrev_b32 v4, 4, v2')
    a.I('v_lshlrev_b32 v5, 10, v3')
    a.I('v_lshl_add_u32 v5, v4, 4, v5')
    a.I('s_lshl_b32 s31, s28, 14')
    a.I('s_lshl_b32 s32, s30, 9')
    a.I('s_add_u32 s31, s31, s32')
    a.I(f's_add_u32 s31, s31, {src:#x}')
    a.I('v_lshlrev_b32 v6, 4, v2')
    a.I('s_lshl_b32 s32, s29, 14')
    a.I('s_lshl_b32 s33, s30, 13')
    a.I('s_add_u32 s32, s32, s33')
    a.I(f's_add_u32 s32, s32, {WS_WKV:#x}')
    a.I('s_add_u32 s33, s32, 4096')
    X, W = 16, 48
    for t in range(8):
        a.I(f'buffer_load_dwordx4 {vr(X + 4 * t, 4)}, v5, s[{SWS}:{SWS + 3}], s31 offen offset:{t * 64}')
        a.I(f'buffer_load_dwordx4 {vr(W + 4 * t, 4)}, v6, s[{SWS}:{SWS + 3}], {"s32" if t < 4 else "s33"} offen offset:{(t & 3) * 1024}')
    ACC, SUM, SQ, CS, ON = 80, 84, 85, 86, 87
    a.I(f'v_mov_b32 v{ON}, {ONES:#x}')
    for r in (SUM, SQ, CS):
        a.I(f'v_mov_b32 v{r}, 0')
    a.I('s_cmp_eq_u32 s29, 1')
    a.I(f's_cbranch_scc1 {P}_v')
    for which in range(2):
        if which == 1:
            a.L(f'{P}_v')
        for t in range(8):
            a.I(f's_waitcnt vmcnt({2 * (7 - t)})')
            A, B = (W + 4 * t, X + 4 * t) if which == 0 else (X + 4 * t, W + 4 * t)
            a.I(f'v_mfma_f32_16x16x32_bf16 {vr(ACC, 4)}, {vr(A, 4)}, {vr(B, 4)}, {"0" if t == 0 else vr(ACC, 4)}')
            for i in range(4):
                a.I(f'v_dot2c_f32_bf16 v{SUM}, v{X + 4 * t + i}, v{ON}')
                a.I(f'v_dot2c_f32_bf16 v{SQ}, v{X + 4 * t + i}, v{X + 4 * t + i}')
                a.I(f'v_dot2c_f32_bf16 v{CS}, v{W + 4 * t + i}, v{ON}')
        if which == 0:
            a.I(f's_branch {P}_j')
    a.L(f'{P}_j')
    for r in (SUM, SQ, CS):
        xsum(a, r, 9)
    a.I('s_lshl_b32 s34, s3, 8')
    a.I('s_add_u32 s34, s34, 2048')
    a.I('v_lshl_add_u32 v7, v3, 2, s34')
    a.I(f'ds_write_b32 v7, v{SUM}')
    a.I(f'ds_write_b32 v7, v{SQ} offset:64')
    a.I(f'ds_write_b32 v7, v{CS} offset:128')
    a.I('s_lshl_b32 s35, s29, 10')
    a.I('v_add_u32 v8, s35, v6')
    a.I('s_cmp_eq_u32 s30, 0')
    a.I(f's_cbranch_scc1 {P}_fin')
    a.I(f'ds_write_b128 v8, {vr(ACC, 4)}')
    a.I('s_waitcnt lgkmcnt(0)')
    a.I('s_barrier')
    a.I('s_endpgm')
    a.L(f'{P}_fin')
    a.I('s_waitcnt lgkmcnt(0)')
    a.I('s_barrier')
    a.I(f'ds_read_b128 v[16:19], v8')
    a.I('ds_read_b32 v20, v7 offset:512')
    a.I('ds_read_b32 v21, v7 offset:576')
    a.I('ds_read_b32 v22, v7 offset:640')
    a.I('v_lshl_add_u32 v10, v4, 4, s34')
    a.I('ds_read_b128 v[24:27], v10')
    a.I('ds_read_b128 v[28:31], v10 offset:64')
    a.I('ds_read_b128 v[32:35], v10 offset:128')
    a.I('ds_read_b128 v[36:39], v10 offset:512')
    a.I('ds_read_b128 v[40:43], v10 offset:576')
    a.I('ds_read_b128 v[44:47], v10 offset:640')
    a.I(f's_mov_b32 s36, {INV512:#x}')
    a.I(f's_mov_b32 s37, {EPS5:#x}')
    a.I('s_waitcnt lgkmcnt(0)')
    for i in range(4):
        a.I(f'v_add_f32 v{ACC + i}, v{ACC + i}, v{16 + i}')
    a.I('s_lshr_b32 s38, s28, 1')
    a.I('s_lshl_b32 s38, s38, 10')
    a.I('s_and_b32 s39, s28, 1')
    a.I('v_and_b32 v11, 1, v4')
    a.I('v_lshrrev_b32 v12, 1, v4')
    a.I('v_lshlrev_b32 v13, 4, v3')
    a.I('v_lshl_add_u32 v13, v12, 3, v13')
    a.I('s_cmp_eq_u32 s29, 1')
    a.I(f's_cbranch_scc1 {P}_fv')
    a.I(f'v_add_f32 v{SUM}, v{SUM}, v20')
    a.I(f'v_add_f32 v{SQ}, v{SQ}, v21')
    a.I(f'v_mul_f32 v{SUM}, s36, v{SUM}')
    a.I(f'v_mul_f32 v{SQ}, s36, v{SQ}')
    a.I(f'v_fma_f32 v{SQ}, -v{SUM}, v{SUM}, v{SQ}')
    a.I(f'v_max_f32 v{SQ}, 0, v{SQ}')
    a.I(f'v_add_f32 v{SQ}, s37, v{SQ}')
    a.I(f'v_rsq_f32 v{SQ}, v{SQ}')
    for i in range(4):
        a.I(f'v_add_f32 v{32 + i}, v{32 + i}, v{44 + i}')
        a.I(f'v_fma_f32 v{ACC + i}, -v{SUM}, v{32 + i}, v{ACC + i}')
        a.I(f'v_mul_f32 v{ACC + i}, v{ACC + i}, v{SQ}')
    a.I('v_lshl_add_u32 v13, v11, 9, v13')
    a.I('s_lshl_b32 s39, s39, 8')
    a.I('s_add_u32 s38, s38, s39')
    a.I(f's_add_u32 s38, s38, {WS_KB:#x}')
    a.I(f's_branch {P}_st')
    a.L(f'{P}_fv')
    a.I(f'v_add_f32 v{CS}, v{CS}, v22')
    for i in range(4):
        a.I(f'v_add_f32 v{24 + i}, v{24 + i}, v{36 + i}')
        a.I(f'v_add_f32 v{28 + i}, v{28 + i}, v{40 + i}')
        a.I(f'v_mul_f32 v{24 + i}, s36, v{24 + i}')
        a.I(f'v_mul_f32 v{28 + i}, s36, v{28 + i}')
        a.I(f'v_fma_f32 v{28 + i}, -v{24 + i}, v{24 + i}, v{28 + i}')
        a.I(f'v_max_f32 v{28 + i}, 0, v{28 + i}')
        a.I(f'v_add_f32 v{28 + i}, s37, v{28 + i}')
        a.I(f'v_rsq_f32 v{28 + i}, v{28 + i}')
        a.I(f'v_fma_f32 v{ACC + i}, -v{24 + i}, v{CS}, v{ACC + i}')
        a.I(f'v_mul_f32 v{ACC + i}, v{ACC + i}, v{28 + i}')
    a.I('v_lshl_add_u32 v13, v11, 8, v13')
    a.I('s_lshl_b32 s39, s39, 9')
    a.I('s_add_u32 s38, s38, s39')
    a.I(f's_add_u32 s38, s38, {WS_VB:#x}')
    a.L(f'{P}_st')
    a.I(f'v_cvt_pk_bf16_f32 v{ACC}, v{ACC}, v{ACC + 1}')
    a.I(f'v_cvt_pk_bf16_f32 v{ACC + 1}, v{ACC + 2}, v{ACC + 3}')
    a.I(f'buffer_store_dwordx2 {vr(ACC, 2)}, v13, s[{SWS}:{SWS + 3}], s38 offen')
    a.L(f'{P}_end')
    a.I('s_endpgm')
    kernels.append((label, 88, 40))


from gen_k4 import gen_k4, K4_LDS


def build(launch_sel=None):
    a = Asm()
    launches = [
        ('k1a_kernel', 256 + NPREP, 256, K1_LDS),
        ('k2a_kernel', 256, 256, K2_LDS),
        ('k3a_kernel', 128, 256, K3_LDS),
        ('k4a_kernel', 256, 512, K4_LDS),
        ('k1b_kernel', 256, 256, K1_LDS),
        ('k2b_kernel', 256, 256, K2_LDS),
        ('k3b_kernel', 128, 256, K3_LDS),
        ('k4b_kernel', 256, 512, K4_LDS),
    ]
    if launch_sel is not None:
        launches = [launches[i] for i in launch_sel]
    hdr = open('cdna_kernels/' + NAME + '.s.ref').read().split('; Override launch')[0]
    a.T(hdr.rstrip())
    for k, g, b, l in launches:
        a.T(f'; @launch kernel={k} grid=({g},1,1) block=({b},1,1) lds={l}')
    a.T('.amdgcn_target "amdgcn-amd-amdhsa--gfx950"')
    a.T('.text')
    gen_k1(a, 'k1a_kernel', True)
    gen_k2(a, 'k2a_kernel', True)
    gen_k3(a, 'k3a_kernel', True)
    gen_k4(a, 'k4a_kernel', True, globals())
    gen_k1(a, 'k1b_kernel', False)
    gen_k2(a, 'k2b_kernel', False)
    gen_k3(a, 'k3b_kernel', False)
    gen_k4(a, 'k4b_kernel', False, globals())
    a.T('.section .rodata,"a"')
    for label, nv, ns in kernels:
        a.T('.p2align 6')
        a.T(f'.amdhsa_kernel {label}')
        a.T(f'  .amdhsa_next_free_vgpr {nv}')
        a.T(f'  .amdhsa_next_free_sgpr {ns}')
        a.T(f'  .amdhsa_accum_offset {(nv + 3) // 4 * 4}')
        a.T('  .amdhsa_group_segment_fixed_size 0')
        a.T('  .amdhsa_kernarg_size 88')
        a.T('  .amdhsa_user_sgpr_count 2')
        a.T('  .amdhsa_user_sgpr_kernarg_segment_ptr 1')
        a.T('  .amdhsa_system_sgpr_workgroup_id_x 1')
        a.T('.end_amdhsa_kernel')
    return a.text()


if __name__ == '__main__':
    out = sys.argv[1] if len(sys.argv) > 1 else 'cdna_kernels/' + NAME + '.s'
    open(out, 'w').write(build())
    print('wrote', out)
```

```python
from asmlib import vr, sr

L_XN = 0
L_QB = 8192
L_OF = 16384
L_XR = 24576
L_PART = 32768
PSTR = 2080
PBUF = 16 * PSTR
L_LP = L_PART + 2 * PBUF
L_FLAG = L_LP + 8192
L_MAX = L_FLAG + 64
K4_LDS = L_MAX + 4096

KREG, VREG, WBUF = 16, 48, 112
S0, S1, PB, OA, QF, OACC, QA = 176, 192, 208, 216, 232, 236, 252
V_L16, V_QR, V_PW, V_LW, V_RED, V_REDL, V_OFW, V_FR, V_QW, V_FM, V_T0, V_T1, V_T2 = 3, 4, 5, 6, 7, 8, 9, 10, 11, 12, 13, 14, 15


def wave_sum(a, x, t):
    for m in ('quad_perm:[1,0,3,2]', 'quad_perm:[2,3,0,1]', 'row_half_mirror', 'row_mirror'):
        a.I(f'v_add_f32_dpp v{x}, v{x}, v{x} {m} row_mask:0xf bank_mask:0xf')
    for lv in (16, 32):
        a.I(f'v_mov_b32 v{t}, v{x}')
        a.I(f'v_permlane{lv}_swap_b32 v{x}, v{t}')
        a.I(f'v_add_f32 v{x}, v{x}, v{t}')


def gen_k4(a, label, first, G):
    WS_X1, WS_X2, WS_X3, WS_WQ, WS_WOB, WS_KB, WS_VB, WS_SIZE = [G[k] for k in
        ('WS_X1', 'WS_X2', 'WS_X3', 'WS_WQ', 'WS_WOB', 'WS_KB', 'WS_VB', 'WS_SIZE')]
    srd, khead, kernels = G['srd'], G['khead'], G['kernels']
    stamp_init, stamp_flush = G['stamp_init'], G['stamp_flush']
    stamp = lambda: G['stamp'](a, label)
    khead(a, label)
    P = label[:3]
    SWS, SOUT, SWL = 20, 24, 32
    a.I('s_cmp_ge_u32 s2, 256')
    a.I(f's_cbranch_scc1 {P}_end')
    a.I(f's_load_dwordx2 s[4:5], s[0:1], {G["KA_OUT"]}')
    a.I(f's_load_dwordx2 s[10:11], s[0:1], {G["KA_WS"]}')
    a.I('v_lshrrev_b32 v1, 6, v0')
    a.I('v_and_b32 v2, 63, v0')
    a.I('v_readfirstlane_b32 s3, v1')
    a.I(f'v_lshlrev_b32 v{V_L16}, 4, v2')
    a.I('s_waitcnt lgkmcnt(0)')
    srd(a, SWS, 10, WS_SIZE)
    srd(a, SWL, 10, WS_SIZE)
    if first:
        srd(a, SOUT, 10, 0x200000, WS_X2)
    else:
        srd(a, SOUT, 4, 0x200000)
    src = WS_X1 if first else WS_X3
    stamp_init(a, label); stamp()
    a.I('s_and_b32 s29, s2, 7')
    a.I('s_lshl_b32 s29, s29, 5')
    a.I('s_lshr_b32 s30, s2, 3')
    a.I('s_add_u32 s29, s29, s30')
    a.I('s_lshl_b32 s30, s29, 3')
    a.I('s_add_u32 s30, s30, s3')
    a.I('s_lshl_b32 s30, s30, 10')
    a.I(f's_add_u32 s30, s30, {src:#x}')
    a.I(f'buffer_load_dwordx4 {vr(S0, 4)}, v{V_L16}, s[{SWS}:{SWS + 3}], s30 offen')
    a.I('s_lshl_b32 s36, s3, 14')
    a.I(f's_add_u32 s31, s36, {WS_WQ:#x}')
    for i in range(16):
        a.I(f'buffer_load_dwordx4 {vr(WBUF + 4 * i, 4)}, v{V_L16}, s[{SWS}:{SWS + 3}], s31 offen offset:{(i & 3) * 1024}')
        if (i & 3) == 3 and i < 15:
            a.I('s_add_u32 s31, s31, 4096')

    def load_kv():
        a.I('s_lshl_b32 s30, s3, 13')
        a.I(f's_add_u32 s31, s30, {WS_KB:#x}')
        for i in range(8):
            a.I(f'buffer_load_dwordx4 {vr(KREG + 4 * i, 4)}, v{V_L16}, s[{SWS}:{SWS + 3}], s31 offen offset:{(i & 3) * 1024}')
            if i == 3:
                a.I('s_add_u32 s31, s31, 4096')
        for i in range(64):
            a.I(f'v_mov_b32 v{VREG + i}, {G["ONES"]:#x}')
        a.I(f'v_and_b32 v{V_T0}, 15, v2')
        a.I(f'v_lshrrev_b32 v{V_T1}, 5, v2')
        a.I(f'v_lshlrev_b32 v{V_T0}, 4, v{V_T0}')
        a.I(f'v_lshl_add_u32 v{V_T0}, v{V_T1}, 8, v{V_T0}')
        a.I(f's_add_u32 s31, s30, {WS_VB:#x}')
        a.I('s_mov_b32 s40, 0x0000ffff')
        a.I('s_mov_b32 s41, 0x0000ffff')
        a.I('s_mov_b64 exec, s[40:41]')
        for i in range(16):
            a.I(f'buffer_load_dwordx4 {vr(VREG + 4 * i, 4)}, v{V_T0}, s[{SWS}:{SWS + 3}], s31 offen offset:{(i & 7) * 512}')
            if i == 7:
                a.I('s_add_u32 s31, s31, 4096')
        a.I('s_mov_b64 exec, -1')
    load_kv()
    a.I(f'v_and_b32 v{V_T0}, 31, v2')
    a.I(f'v_lshrrev_b32 v{V_T1}, 5, v2')
    a.I(f'v_lshlrev_b32 v{V_QR}, 5, v{V_T0}')
    a.I(f'v_lshl_add_u32 v{V_QR}, v{V_T1}, 4, v{V_QR}')
    a.I(f'v_add_u32 v{V_QR}, {L_QB}, v{V_QR}')
    a.I(f's_mul_i32 s30, s3, {PSTR}')
    a.I(f's_add_u32 s30, s30, {L_PART}')
    a.I(f'v_add_u32 v{V_PW}, s30, v{V_L16}')
    a.I('s_lshl_b32 s30, s3, 8')
    a.I(f's_add_u32 s30, s30, {L_LP}')
    a.I(f'v_lshl_add_u32 v{V_LW}, v2, 2, s30')
    a.I('s_lshr_b32 s30, s3, 2')
    a.I('s_bfe_u32 s31, s3, 0x10001')
    a.I('s_and_b32 s37, s3, 1')
    a.I(f's_mul_i32 s38, s30, {8 * PSTR}')
    a.I('s_lshl_b32 s39, s31, 10')
    a.I('s_add_u32 s38, s38, s39')
    a.I('s_lshl_b32 s39, s37, 9')
    a.I('s_add_u32 s38, s38, s39')
    a.I(f's_add_u32 s38, s38, {L_PART}')
    a.I(f'v_lshrrev_b32 v{V_T0}, 1, v2')
    a.I(f'v_and_b32 v{V_T1}, 1, v2')
    a.I(f'v_mul_u32_u24 v{V_RED}, {4 * PSTR}, v{V_T1}')
    a.I(f'v_lshl_add_u32 v{V_RED}, v{V_T0}, 4, v{V_RED}')
    a.I(f'v_add_u32 v{V_RED}, s38, v{V_RED}')
    a.I('s_lshl_b32 s38, s30, 11')
    a.I(f's_add_u32 s38, s38, {L_LP}')
    a.I(f'v_lshlrev_b32 v{V_REDL}, 10, v{V_T1}')
    a.I(f'v_lshl_add_u32 v{V_REDL}, v{V_T0}, 2, v{V_REDL}')
    a.I(f'v_add_u32 v{V_REDL}, s38, v{V_REDL}')
    a.I('s_lshl_b32 s38, s30, 10')
    a.I('s_lshl_b32 s39, s31, 7')
    a.I('s_add_u32 s38, s38, s39')
    a.I('s_lshl_b32 s39, s37, 3')
    a.I('s_add_u32 s38, s38, s39')
    a.I(f's_add_u32 s38, s38, {L_OF}')
    a.I(f'v_lshrrev_b32 v{V_T1}, 3, v{V_T0}')
    a.I(f'v_and_b32 v{V_T0}, 7, v{V_T0}')
    a.I(f'v_lshlrev_b32 v{V_OFW}, 8, v{V_T1}')
    a.I(f'v_lshl_add_u32 v{V_OFW}, v{V_T0}, 4, v{V_OFW}')
    a.I(f'v_add_u32 v{V_OFW}, s38, v{V_OFW}')
    a.I(f'v_lshrrev_b32 v{V_T0}, 4, v2')
    a.I(f'v_and_b32 v{V_T1}, 7, v2')
    a.I(f'v_lshlrev_b32 v{V_FR}, 7, v{V_T0}')
    a.I(f'v_lshl_add_u32 v{V_FR}, v{V_T1}, 4, v{V_FR}')
    a.I('s_lshl_b32 s38, s3, 8')
    a.I(f's_add_u32 s38, s38, {L_QB}')
    a.I(f'v_lshl_add_u32 v{V_QW}, v{V_T1}, 5, s38')
    a.I(f'v_and_b32 v{V_T1}, 1, v{V_T0}')
    a.I(f'v_lshl_add_u32 v{V_QW}, v{V_T1}, 4, v{V_QW}')
    a.I(f'v_lshrrev_b32 v{V_T1}, 1, v{V_T0}')
    a.I(f'v_lshl_add_u32 v{V_QW}, v{V_T1}, 3, v{V_QW}')
    a.I(f'v_mov_b32 v{V_FM}, 0')
    for i in range(16):
        a.I(f'v_mov_b32 v{OACC + i}, 0')
    a.I(f'v_mov_b32 v{V_T0}, {L_FLAG}')
    a.I(f'ds_write_b32 v{V_T0}, v{V_FM}')
    a.I(f's_mov_b32 s42, {G["INV512"]:#x}')
    a.I(f's_mov_b32 s43, {G["EPS5"]:#x}')
    a.I(f's_mov_b32 s44, {G["QSCALE"]:#x}')
    a.I('s_mov_b32 s45, 0x17800000')
    a.I('s_mov_b32 s46, 0x71800000')
    a.I('s_mov_b32 s47, 0x7e800000')
    stamp()
    a.I('s_waitcnt vmcnt(40)')
    stamp()
    F = S1
    a.I('s_lshl_b32 s30, s3, 10')
    a.I(f'v_add_u32 v{V_T2}, s30, v{V_L16}')
    a.I(f'ds_write_b128 v{V_T2}, {vr(S0, 4)} offset:{L_XR}')
    for i in range(4):
        a.I(f'v_lshlrev_b32 v{F + 2 * i}, 16, v{S0 + i}')
        a.I(f'v_and_b32 v{F + 2 * i + 1}, 0xffff0000, v{S0 + i}')
    a.I(f'v_add_f32 v{V_T0}, v{F}, v{F + 1}')
    for i in range(2, 8):
        a.I(f'v_add_f32 v{V_T0}, v{V_T0}, v{F + i}')
    wave_sum(a, V_T0, V_T1)
    a.I(f'v_mul_f32 v{V_T0}, s42, v{V_T0}')
    for i in range(8):
        a.I(f'v_sub_f32 v{F + i}, v{F + i}, v{V_T0}')
    a.I(f'v_mul_f32 v{V_T0}, v{F}, v{F}')
    for i in range(1, 8):
        a.I(f'v_fmac_f32 v{V_T0}, v{F + i}, v{F + i}')
    wave_sum(a, V_T0, V_T1)
    a.I(f'v_mov_b32 v{V_T1}, s43')
    a.I(f'v_fmac_f32 v{V_T1}, s42, v{V_T0}')
    a.I(f'v_rsq_f32 v{V_T1}, v{V_T1}')
    for i in range(8):
        a.I(f'v_mul_f32 v{F + i}, v{F + i}, v{V_T1}')
    for i in range(4):
        a.I(f'v_cvt_pk_bf16_f32 v{S0 + 4 + i}, v{F + 2 * i}, v{F + 2 * i + 1}')
    a.I('s_lshl_b32 s30, s3, 4')
    a.I(f'v_lshl_add_u32 v{V_T2}, v2, 7, s30')
    a.I(f'ds_write_b128 v{V_T2}, {vr(S0 + 4, 4)} offset:{L_XN}')
    a.I('s_waitcnt lgkmcnt(0)')
    a.I('s_barrier')

    def qproj(vm):
        for t in range(8):
            a.I(f'ds_read_b128 {vr(S0 + 4 * t, 4)}, v{V_FR} offset:{L_XN + t * 512}')
        a.I(f's_waitcnt vmcnt({vm})')
        for t in range(16):
            a.I(f's_waitcnt lgkmcnt({min(7, 15 - t)})')
            a.I(f'v_mfma_f32_16x16x32_bf16 {vr(QA, 4)}, {vr(WBUF + 4 * t, 4)}, {vr(S0 + 4 * (t & 7), 4)}, {"0" if t == 0 else vr(QA, 4)}')
            if t + 8 < 16:
                a.I(f'ds_read_b128 {vr(S0 + 4 * (t & 7), 4)}, v{V_FR} offset:{L_XN + (t + 8) * 512}')
        for i in range(4):
            a.I(f'v_mul_f32 v{QA + i}, s44, v{QA + i}')
        a.I(f'v_cvt_pk_bf16_f32 v{QA}, v{QA}, v{QA + 1}')
        a.I(f'v_cvt_pk_bf16_f32 v{QA + 1}, v{QA + 2}, v{QA + 3}')
        a.I(f'ds_write_b64 v{V_QW}, {vr(QA, 2)}')
        a.I(f'v_add_u32 v{V_QW}, 2048, v{V_QW}')

    def outproj(addr):
        for tt in range(4):
            a.I(f'ds_read_b128 {vr(S0 + 4 * tt, 4)}, v{addr} offset:{L_OF + tt * 512}')
        a.I('s_waitcnt vmcnt(0)')
        for tt in range(4):
            a.I(f's_waitcnt lgkmcnt({3 - tt})')
            for nt in range(4):
                a.I(f'v_mfma_f32_16x16x32_bf16 {vr(OACC + 4 * nt, 4)}, {vr(WBUF + 16 * nt + 4 * tt, 4)}, {vr(S0 + 4 * tt, 4)}, {vr(OACC + 4 * nt, 4)}')

    def reduce(red, redl, ofw, fb):
        T, LL = S0, S0 + 16
        for u in range(4):
            a.I(f'ds_read_b128 {vr(T + 4 * u, 4)}, v{red} offset:{u * PSTR}')
            a.I(f'ds_read_b32 v{LL + u}, v{redl} offset:{u * 256}')
        a.I('s_waitcnt lgkmcnt(4)')
        a.I(f'v_pk_add_f32 {vr(T, 2)}, {vr(T, 2)}, {vr(T + 4, 2)}')
        a.I(f'v_pk_add_f32 {vr(T + 2, 2)}, {vr(T + 2, 2)}, {vr(T + 6, 2)}')
        a.I(f'v_add_f32 v{LL}, v{LL}, v{LL + 1}')
        a.I('s_waitcnt lgkmcnt(0)')
        a.I(f'v_pk_add_f32 {vr(T + 8, 2)}, {vr(T + 8, 2)}, {vr(T + 12, 2)}')
        a.I(f'v_pk_add_f32 {vr(T + 10, 2)}, {vr(T + 10, 2)}, {vr(T + 14, 2)}')
        a.I(f'v_add_f32 v{LL + 2}, v{LL + 2}, v{LL + 3}')
        a.I(f'v_pk_add_f32 {vr(T, 2)}, {vr(T, 2)}, {vr(T + 8, 2)}')
        a.I(f'v_add_f32 v{LL}, v{LL}, v{LL + 2}')
        a.I(f'v_pk_add_f32 {vr(T + 2, 2)}, {vr(T + 2, 2)}, {vr(T + 10, 2)}')
        for r in (LL, T, T + 1, T + 2, T + 3):
            a.I(f'v_add_f32_dpp v{r}, v{r}, v{r} quad_perm:[1,0,3,2] row_mask:0xf bank_mask:0xf')
        a.I(f'v_rcp_f32 v{LL + 1}, v{LL}')
        if not fb:
            a.I(f'v_max3_f32 v{LL + 2}, |v{T}|, |v{T + 1}|, |v{T + 2}|')
            a.I(f'v_max_f32 v{LL + 2}, |v{T + 3}|, v{LL + 2}')
            a.I(f'v_cmp_le_f32 s[50:51], s45, v{LL}')
            a.I(f'v_cmp_ge_f32 s[52:53], s46, v{LL}')
            a.I(f'v_cmp_gt_f32 s[54:55], s47, v{LL + 2}')
            a.I(f'v_add_f32 v{LL + 3}, v{T}, v{T + 1}')
            a.I(f'v_add_f32 v{LL + 2}, v{T + 2}, v{T + 3}')
            a.I(f'v_cmp_o_f32 s[56:57], v{LL + 3}, v{LL + 2}')
            a.I('s_and_b64 s[50:51], s[50:51], s[52:53]')
            a.I('s_and_b64 s[54:55], s[54:55], s[56:57]')
            a.I('s_and_b64 s[50:51], s[50:51], s[54:55]')
        else:
            a.I(f'v_and_b32 v{LL + 2}, s49, v{V_FM}')
            a.I(f'v_cmp_ne_u32 s[50:51], 0, v{LL + 2}')
        for i in range(4):
            a.I(f'v_mul_f32 v{T + i}, v{T + i}, v{LL + 1}')
        a.I(f'v_cvt_pk_bf16_f32 v{T}, v{T}, v{T + 1}')
        a.I(f'v_cvt_pk_bf16_f32 v{T + 1}, v{T + 2}, v{T + 3}')
        a.I(f'v_cndmask_b32 v{T}, 0, v{T}, s[50:51]')
        a.I(f'v_cndmask_b32 v{T + 1}, 0, v{T + 1}, s[50:51]')
        a.I(f'ds_write_b64 v{ofw}, {vr(T, 2)}')

    stamp()
    qproj(24)
    a.I('s_waitcnt lgkmcnt(0)')
    stamp()
    a.I('s_barrier')
    a.I('s_mov_b32 s28, 0')
    a.I('s_mov_b32 s49, 1')
    a.I(f'v_mov_b32 v{V_T2}, v{V_FR}')
    a.I(f's_add_u32 s58, s36, {WS_WQ + 8 * 16384:#x}')
    a.I('s_lshl_b32 s59, s3, 16')
    a.I(f's_add_u32 s59, s59, {WS_WOB:#x}')
    a.I('s_waitcnt vmcnt(0)')
    a.L(f'{P}_slot')
    stamp()
    a.I(f'ds_read_b128 {vr(QF, 4)}, v{V_QR}')
    a.I(f'v_add_u32 v{V_QR}, 1024, v{V_QR}')
    a.I('s_cmp_le_u32 s28, 2')
    a.I('s_cselect_b32 s30, s58, s59')
    a.I('s_movk_i32 s31, 4096')
    a.I('s_cselect_b32 s31, s31, 16384')
    a.I('s_cselect_b32 s37, 0x20000, 0')
    a.I('s_add_u32 s58, s58, s37')
    a.I('s_bitcmp1_b32 0xe8, s28')
    a.I('s_cselect_b32 s37, 4096, 0')
    a.I('s_add_u32 s59, s59, s37')
    a.I('s_cmp_eq_u32 s28, 4')
    a.I(f's_cselect_b32 s{SWL + 2}, 0, {WS_SIZE:#x}')
    a.I('s_waitcnt lgkmcnt(0)')
    a.I(f'v_mfma_f32_32x32x16_bf16 {vr(S0, 16)}, {vr(KREG, 4)}, {vr(QF, 4)}, 0')
    wl = [0]

    def wload(n):
        for _ in range(n):
            i = wl[0]
            if i >= 16: return
            a.I(f'buffer_load_dwordx4 {vr(WBUF + 4 * i, 4)}, v{V_L16}, s[{SWL}:{SWL + 3}], s30 offen offset:{(i & 3) * 1024}')
            if (i & 3) == 3 and i < 15:
                a.I('s_add_u32 s30, s30, s31')
            wl[0] += 1

    def E(s, r): a.I(f'v_exp_f32 v{s + r}, v{s + r}')

    def C(s, p): a.I(f'v_cvt_pk_bf16_f32 v{PB + p}, v{s + 2 * p}, v{s + 2 * p + 1}')

    def PV(i, mf):
        c = '0' if (i == 0 and mf == 0) else vr(OA, 16)
        a.I(f'v_mfma_f32_32x32x16_bf16 {vr(OA, 16)}, {vr(VREG + 8 * i + 4 * mf, 4)}, {vr(PB + 4 * mf, 4)}, {c}')

    for i in range(8):
        sc, sn = (S0, S1) if (i & 1) == 0 else (S1, S0)
        if i < 7:
            a.I(f'v_mfma_f32_32x32x16_bf16 {vr(sn, 16)}, {vr(KREG + 4 * (i + 1), 4)}, {vr(QF, 4)}, 0')
        wload(1)
        E(sc, 0); E(sc, 1)
        if i > 0: PV(i - 1, 1)
        for r in range(2, 8): E(sc, r)
        wload(1)
        C(sc, 0); C(sc, 1); E(sc, 8); E(sc, 9); C(sc, 2); C(sc, 3); E(sc, 10); E(sc, 11)
        PV(i, 0)
        wload(1)
        for r in range(12, 16): E(sc, r)
        C(sc, 4); C(sc, 5); C(sc, 6); C(sc, 7)
    PV(7, 1)
    stamp()
    a.I(f'ds_write_b128 v{V_PW}, {vr(OA, 4)}')
    a.I(f'ds_write_b128 v{V_PW}, {vr(OA + 4, 4)} offset:1024')
    a.I(f'ds_write_b32 v{V_LW}, v{OA + 8}')
    a.I('s_and_b32 s37, s28, 3')
    a.I('s_cmp_eq_u32 s37, 3')
    a.I(f's_mov_b32 s37, {8 * PSTR}')
    a.I(f's_cselect_b32 s37, {-24 * PSTR}, s37')
    a.I(f'v_add_u32 v{V_PW}, s37, v{V_PW}')
    a.I(f's_mov_b32 s37, 2048')
    a.I(f's_cselect_b32 s37, {-3 * 2048}, s37')
    a.I(f'v_add_u32 v{V_LW}, s37, v{V_LW}')
    a.I('s_cmp_gt_u32 s28, 2')
    a.I(f's_cbranch_scc1 {P}_bar')
    qproj(0)
    a.L(f'{P}_bar')
    stamp()
    a.I('s_bitcmp0_b32 0x1ea, s28')
    a.I(f's_cbranch_scc1 {P}_next')
    a.I('s_waitcnt lgkmcnt(0)')
    a.I('s_barrier')
    a.I('s_bitcmp0_b32 0x168, s28')
    a.I(f's_cbranch_scc1 {P}_noop')
    outproj(V_T2)
    a.I(f'v_add_u32 v{V_T2}, 2048, v{V_T2}')
    a.I('s_cmp_eq_u32 s28, 8')
    a.I(f's_cbranch_scc1 {P}_done')
    a.L(f'{P}_noop')
    stamp()
    a.I('s_bitcmp0_b32 s28, 0')
    a.I(f's_cbranch_scc1 {P}_next')
    reduce(V_RED, V_REDL, V_OFW, False)
    a.I('s_cmp_eq_u64 s[50:51], exec')
    a.I(f's_cbranch_scc1 {P}_rok')
    a.I(f'v_mov_b32 v{V_T0}, s49')
    a.I(f'v_cndmask_b32 v{V_T0}, v{V_T0}, 0, s[50:51]')
    a.I(f'v_or_b32 v{V_FM}, v{V_FM}, v{V_T0}')
    a.I(f'v_mov_b32 v{V_T1}, {L_FLAG}')
    a.I(f'ds_or_b32 v{V_T1}, v{V_T0}')
    a.L(f'{P}_rok')
    a.I('s_lshl_b32 s49, s49, 1')
    a.I(f'v_add_u32 v{V_OFW}, 2048, v{V_OFW}')
    a.I('s_bitcmp1_b32 s28, 1')
    a.I(f's_mov_b32 s37, {PBUF}')
    a.I(f's_cselect_b32 s37, {-PBUF}, s37')
    a.I(f'v_add_u32 v{V_RED}, s37, v{V_RED}')
    a.I(f's_mov_b32 s37, 4096')
    a.I(f's_cselect_b32 s37, -4096, s37')
    a.I(f'v_add_u32 v{V_REDL}, s37, v{V_REDL}')
    a.L(f'{P}_next')
    a.I('s_add_u32 s28, s28, 1')
    a.I('s_cmp_eq_u32 s28, 8')
    a.I(f's_cbranch_scc1 {P}_bar')
    a.I(f's_branch {P}_slot')
    a.L(f'{P}_done')
    stamp()
    a.I(f'v_mov_b32 v{V_T1}, {L_FLAG}')
    a.I(f'ds_read_b32 v{V_T0}, v{V_T1}')
    a.I(f'v_and_b32 v{S1 + 8}, 7, v2')
    a.I(f'v_lshrrev_b32 v{S1 + 9}, 4, v2')
    a.I(f'v_lshlrev_b32 v{S1 + 8}, 10, v{S1 + 8}')
    a.I(f'v_lshl_add_u32 v{S1 + 8}, v{S1 + 9}, 3, v{S1 + 8}')
    a.I('s_lshl_b32 s30, s3, 7')
    a.I(f'v_add_u32 v{V_QW}, s30, v{S1 + 8}')
    a.I('s_waitcnt lgkmcnt(0)')
    a.I(f'v_readfirstlane_b32 s48, v{V_T0}')
    a.I('s_cmp_lg_u32 s48, 0')
    a.I(f's_cbranch_scc1 {P}_fb')
    a.L(f'{P}_epi')
    for nt in range(4):
        a.I(f'ds_read_b64 {vr(S1 + 2 * nt, 2)}, v{V_QW} offset:{L_XR + 32 * nt}')
    a.I('s_lshl_b32 s30, s29, 13')
    a.I('s_mov_b32 s40, 0x00ff00ff')
    a.I('s_mov_b32 s41, 0x00ff00ff')
    a.I('s_waitcnt lgkmcnt(0)')
    for nt in range(4):
        for p in range(2):
            x = S1 + 2 * nt + p
            a.I(f'v_lshlrev_b32 v{V_T0}, 16, v{x}')
            a.I(f'v_and_b32 v{V_T1}, 0xffff0000, v{x}')
            a.I(f'v_add_f32 v{V_T0}, v{V_T0}, v{OACC + 4 * nt + 2 * p}')
            a.I(f'v_add_f32 v{V_T1}, v{V_T1}, v{OACC + 4 * nt + 2 * p + 1}')
            a.I(f'v_cvt_pk_bf16_f32 v{x}, v{V_T0}, v{V_T1}')
    a.I('s_mov_b64 exec, s[40:41]')
    for nt in range(4):
        a.I(f'buffer_store_dwordx2 {vr(S1 + 2 * nt, 2)}, v{V_QW}, s[{SOUT}:{SOUT + 3}], s30 offen offset:{32 * nt}')
    stamp()
    stamp_flush(a, label, SWS)
    a.L(f'{P}_end')
    a.I('s_endpgm')

    a.L(f'{P}_fb')
    a.I(f'v_subrev_u32 v{V_QR}, 8192, v{V_QR}')
    a.I(f'v_subrev_u32 v{V_OFW}, 8192, v{V_OFW}')
    a.I(f'v_mov_b32 v{V_T2}, v{V_FR}')
    a.I('s_lshl_b32 s59, s3, 16')
    a.I(f's_add_u32 s59, s59, {WS_WOB:#x}')
    a.I('s_mov_b32 s49, 1')
    a.I('s_lshl_b32 s30, s3, 8')
    a.I(f's_add_u32 s30, s30, {L_MAX}')
    a.I(f'v_lshl_add_u32 v{QA}, v2, 2, s30')
    a.I(f'v_lshlrev_b32 v{QA + 1}, 2, v2')
    a.I(f'v_add_u32 v{QA + 1}, {L_MAX}, v{QA + 1}')
    a.L(f'{P}_fbg')
    a.I('s_and_b32 s37, s48, s49')
    a.I(f's_cbranch_scc0 {P}_fbn')
    a.I('s_barrier')
    a.I('s_mov_b32 s30, s59')
    for i in range(16):
        a.I(f'buffer_load_dwordx4 {vr(WBUF + 4 * i, 4)}, v{V_L16}, s[{SWS}:{SWS + 3}], s30 offen offset:{(i & 3) * 1024}')
        if (i & 3) == 3 and i < 15:
            a.I('s_add_u32 s30, s30, 16384')
    a.I('s_mov_b32 s37, 0')
    a.L(f'{P}_fb1')
    a.I(f'v_add_u32 v{V_T0}, s37, v{V_QR}')
    a.I(f'ds_read_b128 {vr(QF, 4)}, v{V_T0}')
    a.I(f'v_mov_b32 v{V_T1}, 0xff800000')
    a.I('s_waitcnt lgkmcnt(0)')
    for i in range(8):
        a.I(f'v_mfma_f32_32x32x16_bf16 {vr(S0, 16)}, {vr(KREG + 4 * i, 4)}, {vr(QF, 4)}, 0')
        for r in range(8):
            a.I(f'v_max3_f32 v{V_T1}, v{V_T1}, v{S0 + 2 * r}, v{S0 + 2 * r + 1}')
    a.I(f'v_mov_b32 v{V_T0}, v{V_T1}')
    a.I(f'v_permlane32_swap_b32 v{V_T1}, v{V_T0}')
    a.I(f'v_max_f32 v{V_T1}, v{V_T1}, v{V_T0}')
    a.I('s_lshl_b32 s38, s37, 1')
    a.I(f'v_add_u32 v{V_T0}, s38, v{QA}')
    a.I(f'ds_write_b32 v{V_T0}, v{V_T1}')
    a.I('s_add_u32 s37, s37, 1024')
    a.I('s_cmp_lt_u32 s37, 2048')
    a.I(f's_cbranch_scc1 {P}_fb1')
    a.I('s_waitcnt lgkmcnt(0)')
    a.I('s_barrier')
    a.I('s_mov_b32 s37, 0')
    a.L(f'{P}_fb2')
    a.I(f'v_add_u32 v{V_T0}, s37, v{V_QR}')
    a.I(f'ds_read_b128 {vr(QF, 4)}, v{V_T0}')
    a.I('s_lshl_b32 s38, s37, 1')
    a.I(f'v_add_u32 v{V_T0}, s38, v{QA + 1}')
    for w in range(8):
        a.I(f'ds_read_b32 v{S0 + w}, v{V_T0} offset:{w * 256}')
    a.I('s_waitcnt lgkmcnt(0)')
    a.I(f'v_max3_f32 v{V_T1}, v{S0}, v{S0 + 1}, v{S0 + 2}')
    a.I(f'v_max3_f32 v{V_T1}, v{V_T1}, v{S0 + 3}, v{S0 + 4}')
    a.I(f'v_max3_f32 v{V_T1}, v{V_T1}, v{S0 + 5}, v{S0 + 6}')
    a.I(f'v_max_f32 v{V_T1}, v{V_T1}, v{S0 + 7}')
    for r in range(16):
        a.I(f'v_sub_f32 v{S1 + r}, 0, v{V_T1}')
    for i in range(8):
        a.I(f'v_mfma_f32_32x32x16_bf16 {vr(S0, 16)}, {vr(KREG + 4 * i, 4)}, {vr(QF, 4)}, {vr(S1, 16)}')
        for r in range(16): E(S0, r)
        for p in range(8): C(S0, p)
        PV(i, 0); PV(i, 1)
    a.I(f's_mul_i32 s38, s37, {8 * PSTR // 1024 if (8 * PSTR) % 1024 == 0 else 0}' if False else '; ctl offsets')
    a.I('s_lshr_b32 s38, s37, 10')
    a.I(f's_mul_i32 s39, s38, {8 * PSTR}')
    a.I(f'v_add_u32 v{V_T0}, s39, v{V_PW}')
    a.I('s_lshl_b32 s39, s38, 11')
    a.I(f'v_add_u32 v{V_T1}, s39, v{V_LW}')
    a.I(f'ds_write_b128 v{V_T0}, {vr(OA, 4)}')
    a.I(f'ds_write_b128 v{V_T0}, {vr(OA + 4, 4)} offset:1024')
    a.I(f'ds_write_b32 v{V_T1}, v{OA + 8}')
    a.I('s_add_u32 s37, s37, 1024')
    a.I('s_cmp_lt_u32 s37, 2048')
    a.I(f's_cbranch_scc1 {P}_fb2')
    a.I('s_waitcnt lgkmcnt(0)')
    a.I('s_barrier')
    reduce(V_RED, V_REDL, V_OFW, True)
    a.I('s_waitcnt lgkmcnt(0)')
    a.I('s_barrier')
    outproj(V_T2)
    a.L(f'{P}_fbn')
    a.I(f'v_add_u32 v{V_QR}, 2048, v{V_QR}')
    a.I(f'v_add_u32 v{V_OFW}, 2048, v{V_OFW}')
    a.I(f'v_add_u32 v{V_T2}, 2048, v{V_T2}')
    a.I('s_add_u32 s59, s59, 4096')
    a.I('s_lshl_b32 s49, s49, 1')
    a.I('s_cmp_lt_u32 s49, 16')
    a.I(f's_cbranch_scc1 {P}_fbg')
    a.I(f's_branch {P}_epi')
    kernels.append((label, 256, 64))
```

```python
import sys
from asmlib import Asm, vr, sr

NAME = 'interleave_layers__linear_attn_block__grouped_kv_mqa__prompt'

WS_PQ = 0x000000
WS_X1 = 0x200000
WS_X2 = 0x400000
WS_X3 = 0x600000
WS_WOA = 0x800000
WS_WQ = 0x880000
WS_WOB = 0x900000
WS_WKV = 0x980000
WS_KB = 0x990000
WS_VB = 0x9A0000
WS_KVP = 0x9B0000
WS_KVF = 0xA40000
WS_SIZE = 0xB80000

KA_AX, KA_WQKV, KA_WOA, KA_BX, KA_WQ, KA_WK, KA_WV, KA_WOB, KA_OUT, KA_DBG, KA_WS = [8 * i for i in range(11)]

LOG2E = 0x3fb8aa3b
ONES = 0x3f803f80
EPS6 = 0x358637bd
EPS5 = 0x3727c5ac
INV512 = 0x3b000000
QSCALE = 0x3eb8aa3b

kernels = []
import os
PROF = os.environ.get('PROF', '')
WS_PROF = 0xA80000


def stamp_init(a, label):
    if not label.startswith(PROF or '#'): return
    a.I('s_mov_b32 s100, 0')
    a.I('v_mov_b32 v1, 0')


def stamp(a, label):
    if not label.startswith(PROF or '#'): return
    a.I('s_memtime s[98:99]')
    a.I('s_waitcnt lgkmcnt(0)')
    a.I('s_mov_b32 m0, s100' if False else '; st')
    a.I('v_writelane_b32 v1, s98, s100' if False else '; st')
    a.I('s_mov_b32 s97, m0')
    a.I('s_mov_b32 m0, s100')
    a.I('v_writelane_b32 v1, s98, m0')
    a.I('s_mov_b32 m0, s97')
    a.I('s_add_u32 s100, s100, 1')


def stamp_flush(a, label, sws):
    if not label.startswith(PROF or '#'): return
    a.I('s_mov_b64 exec, -1')
    a.I('s_lshl_b32 s97, s2, 3')
    a.I('s_add_u32 s97, s97, s3')
    a.I('s_lshl_b32 s97, s97, 8')
    a.I(f's_add_u32 s97, s97, {WS_PROF:#x}')
    a.I('v_and_b32 v0, 63, v0')
    a.I('v_lshlrev_b32 v0, 2, v0')
    a.I(f'buffer_store_dword v1, v0, s[{sws}:{sws + 3}], s97 offen')


def khead(a, label):
    a.T(f'.globl {label}')
    a.T('.p2align 8')
    a.T(f'.type {label},@function')
    a.L(label)


def srd(a, d, base, size, add=0):
    if add:
        a.I(f's_add_u32 s{d}, s{base}, {add:#x}')
        a.I(f's_addc_u32 s{d + 1}, s{base + 1}, 0')
    else:
        a.I(f's_mov_b32 s{d}, s{base}')
        a.I(f's_mov_b32 s{d + 1}, s{base + 1}')
    a.I(f's_mov_b32 s{d + 2}, {size:#x}')
    a.I(f's_mov_b32 s{d + 3}, 0x20000')


def xsum(a, x, t, levels=(16, 32)):
    for lv in levels:
        a.I(f'v_mov_b32 v{t}, v{x}')
        a.I(f'v_permlane{lv}_swap_b32 v{x}, v{t}')
        a.I(f'v_add_f32 v{x}, v{x}, v{t}')


NPREP = 98
K1_LDS_W = 0
K1_LDS_ST = 98304
K1_LDS_KV = 98304 + 2048
K1_LDS_FLAG = K1_LDS_KV + 4 * 2176
K1_LDS = K1_LDS_FLAG + 64


def gen_k1(a, label, first):
    khead(a, label)
    P = label[:3]
    nwg = 256 + (NPREP if first else 0)
    a.I(f's_cmp_ge_u32 s2, {nwg}')
    a.I(f's_cbranch_scc1 {P}_end')
    a.I(f's_load_dwordx4 s[4:7], s[0:1], {KA_AX}')
    a.I(f's_load_dwordx4 s[8:11], s[0:1], {KA_DBG}')
    if first:
        a.I(f's_load_dwordx2 s[40:41], s[0:1], {KA_WOA}')
        a.I(f's_load_dwordx8 s[44:51], s[0:1], {KA_WQ}')
    a.I('v_lshrrev_b32 v1, 6, v0')
    a.I('v_and_b32 v2, 63, v0')
    a.I('v_readfirstlane_b32 s3, v1')
    a.I('s_waitcnt lgkmcnt(0)')
    SX, SW, SWS, SDBG = 12, 16, 20, 24
    if first:
        srd(a, SX, 4, 0x200000)
    else:
        srd(a, SX, 10, 0x200000, WS_X2)
    srd(a, SW, 6, 0x180000)
    srd(a, SWS, 10, WS_SIZE)
    srd(a, SDBG, 8, 256)
    if first:
        a.I('s_cmp_ge_u32 s2, 256')
        a.I(f's_cbranch_scc1 {P}_prep')
    stamp_init(a, label); stamp(a, label)
    a.I('s_and_b32 s28, s2, 7')
    a.I('s_lshl_b32 s28, s28, 1')
    a.I('s_bfe_u32 s29, s2, 0x10003')
    a.I('s_add_u32 s28, s28, s29')
    a.I('s_lshr_b32 s29, s2, 4')
    a.I('s_lshl_b32 s30, s28, 17')
    a.I('s_lshl_b32 s31, s3, 15')
    a.I('s_add_u32 s30, s30, s31')
    a.I('v_and_b32 v3, 31, v2')
    a.I('v_lshrrev_b32 v4, 5, v2')
    a.I('v_lshlrev_b32 v5, 10, v3')
    a.I('v_lshl_add_u32 v5, v4, 4, v5')
    a.I('v_lshrrev_b32 v6, 2, v2')
    a.I('v_mul_u32_u24 v6, 3072, v6')
    a.I('v_and_b32 v7, 3, v2')
    a.I('v_lshl_add_u32 v6, v7, 4, v6')
    a.I('s_mul_i32 s31, s3, 98304')
    a.I('s_lshl_b32 s32, s29, 6')
    a.I('s_add_u32 s31, s31, s32')
    a.I('s_mul_i32 s32, s3, 6144')
    X = 16
    ACC = [144, 160, 176]
    WF = 192
    SUM, SQ = 216, 217
    CS = [218, 219, 220]
    ON = 224
    for c in range(4):
        for u in range(2):
            a.I(f's_add_u32 s33, s31, {(128 * c + 16 * u) * 3072}')
            a.I(f's_add_u32 m0, s32, {(8 * c + u) * 3072}')
            for sub in range(3):
                a.I(f'buffer_load_dwordx4 v6, s[{SW}:{SW + 3}], s33 offen offset:{sub * 1024} lds')
        for t in range(8 * c, 8 * c + 8):
            a.I(f'buffer_load_dwordx4 {vr(X + 4 * t, 4)}, v5, s[{SX}:{SX + 3}], s30 offen offset:{t * 32}')
    stamp(a, label)
    a.I('v_bfe_u32 v7, v2, 2, 2')
    a.I('v_lshl_add_u32 v7, v4, 3, v7')
    a.I('v_lshlrev_b32 v7, 6, v7')
    a.I('v_bfe_u32 v8, v2, 4, 1')
    a.I('v_lshl_add_u32 v7, v8, 5, v7')
    a.I('v_and_b32 v8, 3, v2')
    a.I('v_lshl_add_u32 v7, v8, 3, v7')
    a.I('v_add_u32 v8, 49152, v7')
    for i in range(4):
        a.I(f'v_mov_b32 v{ON + i}, {ONES:#x}')
    for r in (SUM, SQ, *CS):
        a.I(f'v_mov_b32 v{r}, 0')

    def trreads(t):
        b = WF + 12 * (t & 1)
        base = t * 3072
        av = 'v7' if base < 49152 else 'v8'
        off = base if base < 49152 else base - 49152
        for sub in range(3):
            a.I(f'ds_read_b64_tr_b16 {vr(b + 4 * sub, 2)}, {av} offset:{off + sub * 1024}')
            a.I(f'ds_read_b64_tr_b16 {vr(b + 4 * sub + 2, 2)}, {av} offset:{off + sub * 1024 + 256}')

    for c in range(4):
        a.I(f's_waitcnt vmcnt({14 * (3 - c)})')
        stamp(a, label)
        a.I('s_barrier')
        stamp(a, label)
        trreads(8 * c)
        for t in range(8 * c, 8 * c + 8):
            if t + 1 < 8 * c + 8:
                trreads(t + 1)
                a.I('s_waitcnt lgkmcnt(6)')
            else:
                a.I('s_waitcnt lgkmcnt(0)')
            b = WF + 12 * (t & 1)
            x = X + 4 * t
            cc = lambda i: '0' if t == 0 else vr(ACC[i], 16)
            a.I(f'v_mfma_f32_32x32x16_bf16 {vr(ACC[0], 16)}, {vr(b, 4)}, {vr(x, 4)}, {cc(0)}')
            for i in range(4):
                a.I(f'v_dot2c_f32_bf16 v{SUM}, v{x + i}, v{ON}')
                a.I(f'v_dot2c_f32_bf16 v{CS[0]}, v{b + i}, v{ON}')
            a.I(f'v_mfma_f32_32x32x16_bf16 {vr(ACC[1], 16)}, {vr(x, 4)}, {vr(b + 4, 4)}, {cc(1)}')
            for i in range(4):
                a.I(f'v_dot2c_f32_bf16 v{SQ}, v{x + i}, v{x + i}')
                a.I(f'v_dot2c_f32_bf16 v{CS[1]}, v{b + 4 + i}, v{ON}')
            a.I(f'v_mfma_f32_32x32x16_bf16 {vr(ACC[2], 16)}, {vr(x, 4)}, {vr(b + 8, 4)}, {cc(2)}')
            for i in range(4):
                a.I(f'v_dot2c_f32_bf16 v{CS[2]}, v{b + 8 + i}, v{ON}')
    stamp(a, label)
    for r in (SUM, SQ, *CS):
        xsum(a, r, 9, levels=(32,))
    a.I(f's_mov_b32 s34, {INV512:#x}')
    a.I(f's_mov_b32 s35, {EPS5:#x}')
    a.I(f's_mov_b32 s36, {LOG2E:#x}')
    a.I(f's_mov_b32 s37, {EPS6:#x}')
    MU, RS = 10, 11
    a.I(f'v_mul_f32 v{MU}, s34, v{SUM}')
    a.I(f'v_mul_f32 v{RS}, s34, v{SQ}')
    a.I(f'v_fma_f32 v{RS}, -v{MU}, v{MU}, v{RS}')
    a.I(f'v_max_f32 v{RS}, 0, v{RS}')
    a.I(f'v_add_f32 v{RS}, s35, v{RS}')
    a.I(f'v_rsq_f32 v{RS}, v{RS}')
    a.I(f's_lshl_b32 s38, s3, 9')
    a.I(f's_add_u32 s38, s38, {K1_LDS_ST}')
    a.I('v_lshl_add_u32 v12, v3, 2, s38')
    a.I(f'ds_write_b32 v12, v{MU}')
    a.I(f'ds_write_b32 v12, v{RS} offset:128')
    a.I(f'ds_write_b32 v12, v{CS[0]} offset:256')
    a.I('v_lshl_add_u32 v13, v4, 4, s38')
    MUR, RSR, CQR = 16, 32, 48
    a.I('s_waitcnt lgkmcnt(0)')
    for g in range(4):
        a.I(f'ds_read_b128 {vr(MUR + 4 * g, 4)}, v13 offset:{32 * g}')
        a.I(f'ds_read_b128 {vr(RSR + 4 * g, 4)}, v13 offset:{128 + 32 * g}')
    for g in range(4):
        a.I(f'ds_read_b128 {vr(CQR + 4 * g, 4)}, v13 offset:{256 + 32 * g}')
    a.I('s_waitcnt lgkmcnt(4)')
    T1, T2 = 64, 80
    PK, PV = 96, 104
    for r in range(16):
        k = ACC[1] + r
        v = ACC[2] + r
        a.I(f'v_fma_f32 v{k}, -v{MUR + r}, v{CS[1]}, v{k}')
        a.I(f'v_fma_f32 v{v}, -v{MUR + r}, v{CS[2]}, v{v}')
        a.I(f'v_mul_f32 v{k}, v{k}, v{RSR + r}')
        a.I(f'v_mul_f32 v{v}, v{v}, v{RSR + r}')
        a.I(f'v_mul_f32 v{T2 + r}, s36, v{k}')
        a.I(f'v_add_f32 v{k}, 1.0, v{k}')
        a.I(f'v_exp_f32 v{T2 + r}, v{T2 + r} clamp')
    for r in range(16):
        k = ACC[1] + r
        a.I(f'v_max_f32 v{k}, v{k}, v{T2 + r}')
        a.I(f'v_add_f32 v{k}, s37, v{k}')
    for i in range(8):
        a.I(f'v_cvt_pk_bf16_f32 v{PK + i}, v{ACC[1] + 2 * i}, v{ACC[1] + 2 * i + 1}')
        a.I(f'v_cvt_pk_bf16_f32 v{PV + i}, v{ACC[2] + 2 * i}, v{ACC[2] + 2 * i + 1}')
    DKV, DZ = 112, 128
    a.I(f'v_mfma_f32_32x32x16_bf16 {vr(DKV, 16)}, {vr(PK, 4)}, {vr(PV, 4)}, 0')
    a.I(f'v_mfma_f32_32x32x16_bf16 {vr(DZ, 16)}, {vr(PK, 4)}, {vr(ON, 4)}, 0')
    a.I(f'v_mfma_f32_32x32x16_bf16 {vr(DKV, 16)}, {vr(PK + 4, 4)}, {vr(PV + 4, 4)}, {vr(DKV, 16)}')
    a.I(f'v_mfma_f32_32x32x16_bf16 {vr(DZ, 16)}, {vr(PK + 4, 4)}, {vr(ON, 4)}, {vr(DZ, 16)}')
    a.I(f's_mul_i32 s38, s3, 2176')
    a.I(f's_add_u32 s38, s38, {K1_LDS_KV}')
    a.I('v_and_b32 v12, 15, v2')
    a.I('v_lshlrev_b32 v12, 6, v12')
    a.I('v_lshl_add_u32 v12, v4, 5, v12')
    a.I('v_add_u32 v12, s38, v12')
    a.I('s_mov_b32 s42, 0x0000ffff')
    a.I('s_mov_b32 s43, 0x0000ffff')
    a.I('s_mov_b64 exec, s[42:43]')
    a.I(f'ds_write_b128 v12, {vr(DKV, 4)}')
    a.I(f'ds_write_b128 v12, {vr(DKV + 4, 4)} offset:16')
    a.I('s_not_b64 exec, s[42:43]')
    a.I(f'ds_write_b128 v12, {vr(DKV + 8, 4)} offset:1088')
    a.I(f'ds_write_b128 v12, {vr(DKV + 12, 4)} offset:{1088 + 16}')
    a.I('s_mov_b32 s42, 1')
    a.I('s_mov_b32 s43, 1')
    a.I('s_mov_b64 exec, s[42:43]')
    a.I(f'ds_write_b128 v12, {vr(DZ, 4)} offset:1024')
    a.I(f'ds_write_b128 v12, {vr(DZ + 4, 4)} offset:{1024 + 16}')
    a.I(f'ds_write_b128 v12, {vr(DZ + 8, 4)} offset:{1088 + 1024}')
    a.I(f'ds_write_b128 v12, {vr(DZ + 12, 4)} offset:{1088 + 1024 + 16}')
    a.I('s_mov_b64 exec, -1')
    a.I('s_waitcnt lgkmcnt(0)')
    a.I('s_barrier')
    stamp(a, label)
    a.I('v_lshlrev_b32 v12, 4, v0')
    a.I('s_mul_i32 s38, s29, 34816')
    a.I('s_mul_i32 s39, s28, 2176')
    a.I('s_add_u32 s39, s39, s38')
    a.I(f's_add_u32 s39, s39, {WS_KVP:#x}')
    a.I(f's_add_u32 s38, s38, {WS_KVP:#x}')
    a.I('v_cmp_gt_u32 vcc, 136, v0')
    a.I('s_and_saveexec_b64 s[42:43], vcc')
    a.I(f's_cbranch_execz {P}_nopub')
    a.I(f'v_add_u32 v14, {K1_LDS_KV}, v12')
    for w in range(4):
        a.I(f'ds_read_b128 {vr(64 + 4 * w, 4)}, v14 offset:{2176 * w}')
    a.I('s_waitcnt lgkmcnt(0)')
    for i in range(4):
        a.I(f'v_add_f32 v{64 + i}, v{64 + i}, v{68 + i}')
        a.I(f'v_add_f32 v{72 + i}, v{72 + i}, v{76 + i}')
    for i in range(4):
        a.I(f'v_add_f32 v{64 + i}, v{64 + i}, v{72 + i}')
    a.I(f'buffer_store_dwordx4 v[64:67], v12, s[{SWS}:{SWS + 3}], s39 offen sc1')
    a.L(f'{P}_nopub')
    a.I('s_mov_b64 exec, -1')
    a.I('s_waitcnt vmcnt(0)')
    a.I('s_barrier')
    stamp(a, label)
    a.I('v_mov_b32 v14, 1')
    a.I('v_mov_b32 v15, 0')
    a.I('s_lshl_b32 s33, s29, 2')
    a.I('v_cmp_eq_u32 vcc, 0, v0')
    a.I('s_and_saveexec_b64 s[42:43], vcc')
    a.I(f's_cbranch_execz {P}_noatom')
    a.I(f'buffer_atomic_add v14, v15, s[{SDBG}:{SDBG + 3}], s33 offen sc0 sc1')
    a.L(f'{P}_noatom')
    a.I('s_mov_b64 exec, -1')
    for r in range(16):
        q = ACC[0] + r
        a.I(f'v_fma_f32 v{q}, -v{MU}, v{CQR + r}, v{q}')
        a.I(f'v_mul_f32 v{q}, v{q}, v{RS}')
        a.I(f'v_mul_f32 v{T2 + r}, s36, v{q}')
        a.I(f'v_add_f32 v{q}, 1.0, v{q}')
        a.I(f'v_exp_f32 v{T2 + r}, v{T2 + r} clamp')
    for r in range(16):
        q = ACC[0] + r
        a.I(f'v_max_f32 v{q}, v{q}, v{T2 + r}')
        a.I(f'v_add_f32 v{q}, s37, v{q}')
    for i in range(8):
        a.I(f'v_cvt_pk_bf16_f32 v{PK + i}, v{ACC[0] + 2 * i}, v{ACC[0] + 2 * i + 1}')
    a.I('s_lshl_b32 s30, s28, 2')
    a.I('s_add_u32 s30, s30, s3')
    a.I('s_lshl_b32 s30, s30, 15')
    a.I('s_lshl_b32 s31, s29, 11')
    a.I('s_add_u32 s30, s30, s31')
    a.I('v_lshlrev_b32 v13, 4, v2')
    stamp(a, label)
    a.I('s_waitcnt vmcnt(0)')
    stamp(a, label)
    a.I(f'buffer_store_dwordx4 {vr(PK, 4)}, v13, s[{SWS}:{SWS + 3}], s30 offen')
    a.I(f'buffer_store_dwordx4 {vr(PK + 4, 4)}, v13, s[{SWS}:{SWS + 3}], s30 offen offset:1024')
    a.I(f'v_mov_b32 v15, {K1_LDS_FLAG}')
    a.I('v_cmp_eq_u32 vcc, 0, v0')
    a.I('s_and_saveexec_b64 s[42:43], vcc')
    a.I('ds_write_b32 v15, v14')
    a.I('s_mov_b64 exec, -1')
    a.I('s_waitcnt lgkmcnt(0)')
    a.I('s_barrier')
    a.I('ds_read_b32 v14, v15')
    a.I('s_waitcnt lgkmcnt(0)')
    a.I('v_readfirstlane_b32 s33, v14')
    stamp(a, label)
    if PROF and label.startswith(PROF):
        a.I('v_mov_b32 v9, v0')
        stamp_flush(a, label, SWS)
        a.I('v_mov_b32 v0, v9')
    a.I('s_cmp_lg_u32 s33, 15')
    a.I(f's_cbranch_scc1 {P}_end')
    a.I('v_cmp_gt_u32 vcc, 136, v0')
    a.I('s_and_saveexec_b64 s[42:43], vcc')
    a.I(f's_cbranch_execz {P}_end')
    for rb in range(16):
        a.I(f'buffer_load_dwordx4 {vr(16 + 4 * rb, 4)}, v12, s[{SWS}:{SWS + 3}], s38 offen sc1')
        if rb < 15:
            a.I('s_add_u32 s38, s38, 2176')
    for st in range(4):
        n = 16 >> st
        if st == 0:
            a.I('s_waitcnt vmcnt(0)')
        for j in range(n // 2):
            for i in range(4):
                a.I(f'v_add_f32 v{16 + 4 * j + i}, v{16 + 4 * j + i}, v{16 + 4 * (j + n // 2) + i}')
    a.I('v_cvt_pk_bf16_f32 v16, v16, v17')
    a.I('v_cvt_pk_bf16_f32 v17, v18, v19')
    a.I('v_lshlrev_b32 v12, 3, v0')
    a.I('s_mul_i32 s38, s29, 1088')
    a.I(f's_add_u32 s38, s38, {WS_KVF:#x}')
    a.I(f'buffer_store_dwordx2 v[16:17], v12, s[{SWS}:{SWS + 3}], s38 offen')
    stamp(a, label)
    stamp_flush(a, label, SWS)
    a.L(f'{P}_end')
    a.I('s_endpgm')
    if first:
        gen_prep(a, P, SWS)
    kernels.append((label, 228, 56))


def gen_prep(a, P, SWS):
    a.L(f'{P}_prep')
    a.I('s_sub_u32 s28, s2, 256')
    a.I('s_and_b32 s29, s28, 31')
    a.I('s_lshl_b32 s29, s29, 4')
    a.I('s_lshl_b32 s30, s3, 2')
    a.I('s_add_u32 s29, s29, s30')
    a.I('s_lshr_b32 s28, s28, 5')
    a.I('v_lshlrev_b32 v13, 4, v2')
    SS = 52
    a.I('s_cmp_eq_u32 s28, 0')
    a.I(f's_cbranch_scc1 {P}_pwoa')
    a.I('s_cmp_eq_u32 s28, 3')
    a.I(f's_cbranch_scc1 {P}_pwkv')
    a.I('s_cmp_eq_u32 s28, 1')
    a.I('s_cselect_b32 s52, s44, s50')
    a.I('s_cselect_b32 s53, s45, s51')
    a.I('s_mov_b32 s54, 0x80000')
    a.I('s_mov_b32 s55, 0x20000')
    a.I(f's_mov_b32 s31, {WS_WQ:#x}')
    a.I(f's_mov_b32 s32, {WS_WOB:#x}')
    a.I('s_cselect_b32 s31, s31, s32')
    a.I('v_and_b32 v3, 15, v2')
    a.I('v_lshrrev_b32 v4, 4, v2')
    a.I('v_lshlrev_b32 v4, 13, v4')
    a.I('v_lshl_add_u32 v4, v3, 1, v4')
    a.I('v_add_u32 v5, 4096, v4')
    a.I('s_and_b32 s32, s29, 15')
    a.I('s_lshl_b32 s32, s32, 15')
    a.I('s_lshr_b32 s33, s29, 4')
    a.I('s_lshl_b32 s33, s33, 5')
    a.I('s_add_u32 s32, s32, s33')
    for u in range(4):
        for j in range(8):
            av = 'v4' if j < 4 else 'v5'
            a.I(f'buffer_load_ushort v{16 + 16 * (j & 1) + 4 * u + j // 2}, {av}, s[{SS}:{SS + 3}], s32 offen offset:{(j & 3) * 1024}')
        if u < 3:
            a.I('s_add_u32 s32, s32, 0x8000')
    a.I(f's_branch {P}_pstore')
    a.L(f'{P}_pwoa')
    a.I('s_mov_b32 s52, s40')
    a.I('s_mov_b32 s53, s41')
    a.I('s_mov_b32 s54, 0x80000')
    a.I('s_mov_b32 s55, 0x20000')
    a.I(f's_mov_b32 s31, {WS_WOA:#x}')
    a.I('v_and_b32 v3, 31, v2')
    a.I('v_lshrrev_b32 v4, 5, v2')
    a.I('v_lshlrev_b32 v4, 12, v4')
    a.I('v_lshl_add_u32 v4, v3, 1, v4')
    a.I('v_add_u32 v5, 8192, v4')
    a.I('s_and_b32 s32, s29, 31')
    a.I('s_lshl_b32 s32, s32, 14')
    a.I('s_lshr_b32 s33, s29, 5')
    a.I('s_lshl_b32 s33, s33, 6')
    a.I('s_add_u32 s32, s32, s33')
    for u in range(4):
        for j in range(8):
            av = 'v4' if j < 4 else 'v5'
            a.I(f'buffer_load_ushort v{16 + 16 * (j & 1) + 4 * u + j // 2}, {av}, s[{SS}:{SS + 3}], s32 offen offset:{(j & 3) * 1024}')
        if u < 3:
            a.I('s_add_u32 s32, s32, 0x4000')
    a.I(f's_branch {P}_pstore')
    a.L(f'{P}_pwkv')
    a.I('s_cmp_lt_u32 s29, 16')
    a.I('s_cselect_b32 s52, s46, s48')
    a.I('s_cselect_b32 s53, s47, s49')
    a.I('s_mov_b32 s54, 0x4000')
    a.I('s_mov_b32 s55, 0x20000')
    a.I(f's_mov_b32 s31, {WS_WKV:#x}')
    a.I('v_and_b32 v3, 15, v2')
    a.I('v_lshrrev_b32 v4, 4, v2')
    a.I('v_lshlrev_b32 v4, 8, v4')
    a.I('v_lshl_add_u32 v4, v3, 1, v4')
    a.I('s_and_b32 s32, s29, 15')
    a.I('s_lshl_b32 s32, s32, 10')
    for u in range(4):
        for j in range(8):
            a.I(f'buffer_load_ushort v{16 + 16 * (j & 1) + 4 * u + j // 2}, v4, s[{SS}:{SS + 3}], s32 offen offset:{u * 1024 + j * 32}')
    a.L(f'{P}_pstore')
    a.I('s_lshl_b32 s29, s29, 10')
    a.I('s_add_u32 s31, s31, s29')
    for u in range(4):
        a.I(f's_waitcnt vmcnt({8 * (3 - u) + u})')
        for i in range(4):
            a.I(f'v_lshl_or_b32 v{16 + 4 * u + i}, v{32 + 4 * u + i}, 16, v{16 + 4 * u + i}')
        a.I(f'buffer_store_dwordx4 {vr(16 + 4 * u, 4)}, v13, s[{SWS}:{SWS + 3}], s31 offen offset:{u * 1024}')
    a.I('s_endpgm')


K2_LDS = 32768


def gen_k2(a, label, first):
    khead(a, label)
    P = label[:3]
    a.I('s_cmp_ge_u32 s2, 256')
    a.I(f's_cbranch_scc1 {P}_end')
    a.I(f's_load_dwordx2 s[4:5], s[0:1], {KA_AX}')
    a.I(f's_load_dwordx2 s[10:11], s[0:1], {KA_WS}')
    a.I('v_lshrrev_b32 v1, 6, v0')
    a.I('v_and_b32 v2, 63, v0')
    a.I('v_readfirstlane_b32 s3, v1')
    a.I('s_waitcnt lgkmcnt(0)')
    SX, SWS = 12, 20
    if first:
        srd(a, SX, 4, 0x200000)
    else:
        srd(a, SX, 10, 0x200000, WS_X2)
    srd(a, SWS, 10, WS_SIZE)
    stamp_init(a, label); stamp(a, label)
    a.I('s_and_b32 s28, s2, 7')
    a.I('s_lshl_b32 s28, s28, 3')
    a.I('s_bfe_u32 s29, s2, 0x30003')
    a.I('s_add_u32 s28, s28, s29')
    a.I('s_lshr_b32 s29, s2, 6')
    PQ, KV, WO, XR = 16, 48, 80, 208
    D0 = 216
    a.I('v_lshlrev_b32 v3, 4, v2')
    a.I('s_lshl_b32 s30, s28, 15')
    a.I('s_lshl_b32 s31, s3, 13')
    a.I('s_add_u32 s30, s30, s31')
    a.I('s_add_u32 s31, s30, 4096')
    a.I('v_and_b32 v4, 31, v2')
    a.I('v_lshrrev_b32 v5, 5, v2')
    a.I('v_min_u32 v6, 16, v4')
    a.I('v_lshlrev_b32 v6, 5, v6')
    a.I('v_lshl_add_u32 v6, v5, 4, v6')
    a.I('s_mul_i32 s32, s3, 4352')
    a.I(f's_add_u32 s32, s32, {WS_KVF:#x}')
    for i in range(8):
        a.I(f'buffer_load_dwordx4 {vr(PQ + 4 * i, 4)}, v3, s[{SWS}:{SWS + 3}], {"s30" if i < 4 else "s31"} offen offset:{(i & 3) * 1024}')
        a.I(f'buffer_load_dwordx4 {vr(KV + 4 * i, 4)}, v6, s[{SWS}:{SWS + 3}], s32 offen offset:{i * 544}')
    a.I('s_lshl_b32 s33, s29, 2')
    a.I('s_add_u32 s33, s33, s3')
    a.I('s_lshl_b32 s34, s33, 15')
    a.I(f's_add_u32 s34, s34, {WS_WOA:#x}')
    for h in range(32):
        a.I(f'buffer_load_dwordx4 {vr(WO + 4 * h, 4)}, v3, s[{SWS}:{SWS + 3}], s34 offen offset:{(h & 3) * 1024}')
        if (h & 3) == 3 and h < 31:
            a.I('s_add_u32 s34, s34, 4096')
    a.I('v_lshlrev_b32 v7, 10, v4')
    a.I('v_lshl_add_u32 v7, v5, 3, v7')
    a.I('s_lshl_b32 s35, s28, 15')
    a.I('s_lshl_b32 s36, s33, 6')
    a.I('s_add_u32 s35, s35, s36')
    for g in range(4):
        a.I(f'buffer_load_dwordx2 {vr(XR + 2 * g, 2)}, v7, s[{SX}:{SX + 3}], s35 offen offset:{16 * g}')
    a.I(f's_mov_b32 s37, {EPS6:#x}')
    a.I('s_lshl_b32 s36, s3, 13')
    a.I('v_add_u32 v8, s36, v3')
    def pa_mfma(i):
        a.I(f's_waitcnt vmcnt({36 + 2 * (7 - i)})')
        a.I(f'v_mfma_f32_32x32x16_bf16 {vr(D0 + 16 * (i & 1), 16)}, {vr(KV + 4 * i, 4)}, {vr(PQ + 4 * i, 4)}, 0')
    stamp(a, label)
    pa_mfma(0)
    stamp(a, label)
    for i in range(8):
        if i < 7:
            pa_mfma(i + 1)
        d = D0 + 16 * (i & 1)
        a.I(f'v_add_f32 v9, s37, v{d + 8}')
        a.I('v_rcp_f32 v9, v9')
        for r in range(8):
            a.I(f'v_mul_f32 v{d + r}, v{d + r}, v9')
        for r in range(4):
            a.I(f'v_cvt_pk_bf16_f32 v{PQ + 4 * i + r}, v{d + 2 * r}, v{d + 2 * r + 1}')
        a.I(f'ds_write_b128 v8, {vr(PQ + 4 * i, 4)} offset:{i * 1024}')
    a.I('s_waitcnt lgkmcnt(0)')
    a.I('s_barrier')
    stamp(a, label)
    OFR = 16
    for h in range(8):
        a.I(f'ds_read_b128 {vr(OFR + 4 * h, 4)}, v3 offset:{h * 1024}')
    for h in range(32):
        if h + 8 < 32:
            a.I(f'ds_read_b128 {vr(OFR + 4 * ((h + 8) & 15), 4)}, v3 offset:{(h + 8) * 1024}')
        a.I(f's_waitcnt vmcnt({4 + 31 - h}) lgkmcnt({min(8, 31 - h)})')
        a.I(f'v_mfma_f32_32x32x16_bf16 {vr(D0, 16)}, {vr(WO + 4 * h, 4)}, {vr(OFR + 4 * (h & 15), 4)}, {"0" if h == 0 else vr(D0, 16)}')
    a.I('s_waitcnt vmcnt(0)')
    stamp(a, label)
    dst = WS_X1 if first else WS_X3
    a.I(f's_add_u32 s35, s35, {dst:#x}')
    for g in range(4):
        x = XR + 2 * g
        for p in range(2):
            a.I(f'v_lshlrev_b32 v9, 16, v{x + p}')
            a.I(f'v_and_b32 v10, 0xffff0000, v{x + p}')
            a.I(f'v_add_f32 v9, v9, v{D0 + 4 * g + 2 * p}')
            a.I(f'v_add_f32 v10, v10, v{D0 + 4 * g + 2 * p + 1}')
            a.I(f'v_cvt_pk_bf16_f32 v{x + p}, v9, v10')
        a.I(f'buffer_store_dwordx2 {vr(x, 2)}, v7, s[{SWS}:{SWS + 3}], s35 offen offset:{16 * g}')
    stamp(a, label)
    stamp_flush(a, label, SWS)
    a.L(f'{P}_end')
    a.I('s_endpgm')
    kernels.append((label, 248, 40))


K3_LDS = 4096


def gen_k3(a, label, first):
    khead(a, label)
    P = label[:3]
    a.I('s_cmp_ge_u32 s2, 128')
    a.I(f's_cbranch_scc1 {P}_end')
    a.I(f's_load_dwordx2 s[10:11], s[0:1], {KA_WS}')
    a.I('v_lshrrev_b32 v1, 6, v0')
    a.I('v_and_b32 v2, 63, v0')
    a.I('v_readfirstlane_b32 s3, v1')
    a.I('s_waitcnt lgkmcnt(0)')
    SWS = 20
    srd(a, SWS, 10, WS_SIZE)
    src = WS_X1 if first else WS_X3
    a.I('s_and_b32 s28, s2, 7')
    a.I('s_lshl_b32 s28, s28, 4')
    a.I('s_lshr_b32 s29, s2, 3')
    a.I('s_add_u32 s28, s28, s29')
    a.I('s_and_b32 s29, s3, 1')
    a.I('s_lshr_b32 s30, s3, 1')
    a.I('v_and_b32 v3, 15, v2')
    a.I('v_lshrrev_b32 v4, 4, v2')
    a.I('v_lshlrev_b32 v5, 10, v3')
    a.I('v_lshl_add_u32 v5, v4, 4, v5')
    a.I('s_lshl_b32 s31, s28, 14')
    a.I('s_lshl_b32 s32, s30, 9')
    a.I('s_add_u32 s31, s31, s32')
    a.I(f's_add_u32 s31, s31, {src:#x}')
    a.I('v_lshlrev_b32 v6, 4, v2')
    a.I('s_lshl_b32 s32, s29, 14')
    a.I('s_lshl_b32 s33, s30, 13')
    a.I('s_add_u32 s32, s32, s33')
    a.I(f's_add_u32 s32, s32, {WS_WKV:#x}')
    a.I('s_add_u32 s33, s32, 4096')
    X, W = 16, 48
    for t in range(8):
        a.I(f'buffer_load_dwordx4 {vr(X + 4 * t, 4)}, v5, s[{SWS}:{SWS + 3}], s31 offen offset:{t * 64}')
        a.I(f'buffer_load_dwordx4 {vr(W + 4 * t, 4)}, v6, s[{SWS}:{SWS + 3}], {"s32" if t < 4 else "s33"} offen offset:{(t & 3) * 1024}')
    ACC, SUM, SQ, CS, ON = 80, 84, 85, 86, 87
    a.I(f'v_mov_b32 v{ON}, {ONES:#x}')
    for r in (SUM, SQ, CS):
        a.I(f'v_mov_b32 v{r}, 0')
    a.I('s_cmp_eq_u32 s29, 1')
    a.I(f's_cbranch_scc1 {P}_v')
    for which in range(2):
        if which == 1:
            a.L(f'{P}_v')
        for t in range(8):
            a.I(f's_waitcnt vmcnt({2 * (7 - t)})')
            A, B = (W + 4 * t, X + 4 * t) if which == 0 else (X + 4 * t, W + 4 * t)
            a.I(f'v_mfma_f32_16x16x32_bf16 {vr(ACC, 4)}, {vr(A, 4)}, {vr(B, 4)}, {"0" if t == 0 else vr(ACC, 4)}')
            for i in range(4):
                a.I(f'v_dot2c_f32_bf16 v{SUM}, v{X + 4 * t + i}, v{ON}')
                a.I(f'v_dot2c_f32_bf16 v{SQ}, v{X + 4 * t + i}, v{X + 4 * t + i}')
                a.I(f'v_dot2c_f32_bf16 v{CS}, v{W + 4 * t + i}, v{ON}')
        if which == 0:
            a.I(f's_branch {P}_j')
    a.L(f'{P}_j')
    for r in (SUM, SQ, CS):
        xsum(a, r, 9)
    a.I('s_lshl_b32 s34, s3, 8')
    a.I('s_add_u32 s34, s34, 2048')
    a.I('v_lshl_add_u32 v7, v3, 2, s34')
    a.I(f'ds_write_b32 v7, v{SUM}')
    a.I(f'ds_write_b32 v7, v{SQ} offset:64')
    a.I(f'ds_write_b32 v7, v{CS} offset:128')
    a.I('s_lshl_b32 s35, s29, 10')
    a.I('v_add_u32 v8, s35, v6')
    a.I('s_cmp_eq_u32 s30, 0')
    a.I(f's_cbranch_scc1 {P}_fin')
    a.I(f'ds_write_b128 v8, {vr(ACC, 4)}')
    a.I('s_waitcnt lgkmcnt(0)')
    a.I('s_barrier')
    a.I('s_endpgm')
    a.L(f'{P}_fin')
    a.I('s_waitcnt lgkmcnt(0)')
    a.I('s_barrier')
    a.I(f'ds_read_b128 v[16:19], v8')
    a.I('ds_read_b32 v20, v7 offset:512')
    a.I('ds_read_b32 v21, v7 offset:576')
    a.I('ds_read_b32 v22, v7 offset:640')
    a.I('v_lshl_add_u32 v10, v4, 4, s34')
    a.I('ds_read_b128 v[24:27], v10')
    a.I('ds_read_b128 v[28:31], v10 offset:64')
    a.I('ds_read_b128 v[32:35], v10 offset:128')
    a.I('ds_read_b128 v[36:39], v10 offset:512')
    a.I('ds_read_b128 v[40:43], v10 offset:576')
    a.I('ds_read_b128 v[44:47], v10 offset:640')
    a.I(f's_mov_b32 s36, {INV512:#x}')
    a.I(f's_mov_b32 s37, {EPS5:#x}')
    a.I('s_waitcnt lgkmcnt(0)')
    for i in range(4):
        a.I(f'v_add_f32 v{ACC + i}, v{ACC + i}, v{16 + i}')
    a.I('s_lshr_b32 s38, s28, 1')
    a.I('s_lshl_b32 s38, s38, 10')
    a.I('s_and_b32 s39, s28, 1')
    a.I('v_and_b32 v11, 1, v4')
    a.I('v_lshrrev_b32 v12, 1, v4')
    a.I('v_lshlrev_b32 v13, 4, v3')
    a.I('v_lshl_add_u32 v13, v12, 3, v13')
    a.I('s_cmp_eq_u32 s29, 1')
    a.I(f's_cbranch_scc1 {P}_fv')
    a.I(f'v_add_f32 v{SUM}, v{SUM}, v20')
    a.I(f'v_add_f32 v{SQ}, v{SQ}, v21')
    a.I(f'v_mul_f32 v{SUM}, s36, v{SUM}')
    a.I(f'v_mul_f32 v{SQ}, s36, v{SQ}')
    a.I(f'v_fma_f32 v{SQ}, -v{SUM}, v{SUM}, v{SQ}')
    a.I(f'v_max_f32 v{SQ}, 0, v{SQ}')
    a.I(f'v_add_f32 v{SQ}, s37, v{SQ}')
    a.I(f'v_rsq_f32 v{SQ}, v{SQ}')
    for i in range(4):
        a.I(f'v_add_f32 v{32 + i}, v{32 + i}, v{44 + i}')
        a.I(f'v_fma_f32 v{ACC + i}, -v{SUM}, v{32 + i}, v{ACC + i}')
        a.I(f'v_mul_f32 v{ACC + i}, v{ACC + i}, v{SQ}')
    a.I('v_lshl_add_u32 v13, v11, 9, v13')
    a.I('s_lshl_b32 s39, s39, 8')
    a.I('s_add_u32 s38, s38, s39')
    a.I(f's_add_u32 s38, s38, {WS_KB:#x}')
    a.I(f's_branch {P}_st')
    a.L(f'{P}_fv')
    a.I(f'v_add_f32 v{CS}, v{CS}, v22')
    for i in range(4):
        a.I(f'v_add_f32 v{24 + i}, v{24 + i}, v{36 + i}')
        a.I(f'v_add_f32 v{28 + i}, v{28 + i}, v{40 + i}')
        a.I(f'v_mul_f32 v{24 + i}, s36, v{24 + i}')
        a.I(f'v_mul_f32 v{28 + i}, s36, v{28 + i}')
        a.I(f'v_fma_f32 v{28 + i}, -v{24 + i}, v{24 + i}, v{28 + i}')
        a.I(f'v_max_f32 v{28 + i}, 0, v{28 + i}')
        a.I(f'v_add_f32 v{28 + i}, s37, v{28 + i}')
        a.I(f'v_rsq_f32 v{28 + i}, v{28 + i}')
        a.I(f'v_fma_f32 v{ACC + i}, -v{24 + i}, v{CS}, v{ACC + i}')
        a.I(f'v_mul_f32 v{ACC + i}, v{ACC + i}, v{28 + i}')
    a.I('v_lshl_add_u32 v13, v11, 8, v13')
    a.I('s_lshl_b32 s39, s39, 9')
    a.I('s_add_u32 s38, s38, s39')
    a.I(f's_add_u32 s38, s38, {WS_VB:#x}')
    a.L(f'{P}_st')
    a.I(f'v_cvt_pk_bf16_f32 v{ACC}, v{ACC}, v{ACC + 1}')
    a.I(f'v_cvt_pk_bf16_f32 v{ACC + 1}, v{ACC + 2}, v{ACC + 3}')
    a.I(f'buffer_store_dwordx2 {vr(ACC, 2)}, v13, s[{SWS}:{SWS + 3}], s38 offen')
    a.L(f'{P}_end')
    a.I('s_endpgm')
    kernels.append((label, 88, 40))


from gen_k4 import gen_k4, K4_LDS


def build(launch_sel=None):
    a = Asm()
    launches = [
        ('k1a_kernel', 256 + NPREP, 256, K1_LDS),
        ('k2a_kernel', 256, 256, K2_LDS),
        ('k3a_kernel', 128, 256, K3_LDS),
        ('k4a_kernel', 256, 512, K4_LDS),
        ('k1b_kernel', 256, 256, K1_LDS),
        ('k2b_kernel', 256, 256, K2_LDS),
        ('k3b_kernel', 128, 256, K3_LDS),
        ('k4b_kernel', 256, 512, K4_LDS),
    ]
    if launch_sel is not None:
        launches = [launches[i] for i in launch_sel]
    hdr = open('cdna_kernels/' + NAME + '.s.ref').read().split('; Override launch')[0]
    a.T(hdr.rstrip())
    for k, g, b, l in launches:
        a.T(f'; @launch kernel={k} grid=({g},1,1) block=({b},1,1) lds={l}')
    a.T('.amdgcn_target "amdgcn-amd-amdhsa--gfx950"')
    a.T('.text')
    gen_k1(a, 'k1a_kernel', True)
    gen_k2(a, 'k2a_kernel', True)
    gen_k3(a, 'k3a_kernel', True)
    gen_k4(a, 'k4a_kernel', True, globals())
    gen_k1(a, 'k1b_kernel', False)
    gen_k2(a, 'k2b_kernel', False)
    gen_k3(a, 'k3b_kernel', False)
    gen_k4(a, 'k4b_kernel', False, globals())
    a.T('.section .rodata,"a"')
    for label, nv, ns in kernels:
        a.T('.p2align 6')
        a.T(f'.amdhsa_kernel {label}')
        a.T(f'  .amdhsa_next_free_vgpr {nv}')
        a.T(f'  .amdhsa_next_free_sgpr {102 if PROF else ns}')
        a.T(f'  .amdhsa_accum_offset {(nv + 3) // 4 * 4}')
        a.T('  .amdhsa_group_segment_fixed_size 0')
        a.T('  .amdhsa_kernarg_size 88')
        a.T('  .amdhsa_user_sgpr_count 2')
        a.T('  .amdhsa_user_sgpr_kernarg_segment_ptr 1')
        a.T('  .amdhsa_system_sgpr_workgroup_id_x 1')
        a.T('.end_amdhsa_kernel')
    return a.text()


if __name__ == '__main__':
    out = sys.argv[1] if len(sys.argv) > 1 else 'cdna_kernels/' + NAME + '.s'
    open(out, 'w').write(build())
    print('wrote', out)
```
